```python
import torch

def _softmax(x, axis=-1):
    return torch.softmax(x, dim=axis)
def _gelu(x):
    return torch.nn.functional.gelu(x, approximate="tanh")
def _silu(x):
    return torch.nn.functional.silu(x)
def _sigmoid(x):
    return torch.sigmoid(x)
def _layernorm(x, axis=-1, eps=1e-5):
    m = x.mean(dim=axis, keepdim=True)
    v = x.var(dim=axis, keepdim=True, unbiased=False)
    return (x - m) / torch.sqrt(v + eps)
def _scatter_add(tgt, idx, src, axis=0):
    return tgt.clone().index_add_(axis, idx, src)
def _segment_sum(src, seg, n):
    out = torch.zeros((n,) + src.shape[1:], dtype=src.dtype)
    return out.index_add_(0, seg, src)
def _pad(x, pw):
    flat = tuple(v for pair in reversed(pw) for v in pair)
    return torch.nn.functional.pad(x, flat)

kernel_name = 'concat_heads__ssm_conv_s5__mha_block__prompt'

def setup_inputs():

    _w = (lambda a: (lambda t: t.to(torch.bfloat16) if t.is_floating_point() else t)(torch.as_tensor(a)))
    def _A_setup():
        B, S, D = 1, 2048, 576
        P = D
        Lambda_re = -0.5 * (lambda _x: torch.exp(torch.as_tensor(_x)))((lambda *s: torch.randn(*s, dtype=torch.bfloat16) * 0.4)(P))
        Lambda_im = (lambda *s: torch.randn(*s, dtype=torch.bfloat16) * 0.8)(P) * 1.0
        B_re = (lambda *s: torch.randn(*s, dtype=torch.bfloat16) * 0.8)(P, D) * (D ** -0.5)
        B_im = (lambda *s: torch.randn(*s, dtype=torch.bfloat16) * 0.8)(P, D) * (D ** -0.5)
        C_re = (lambda *s: torch.randn(*s, dtype=torch.bfloat16) * 0.8)(D, P) * (P ** -0.5)
        C_im = (lambda *s: torch.randn(*s, dtype=torch.bfloat16) * 0.8)(D, P) * (P ** -0.5)
        log_dt = (lambda *s: torch.randn(*s, dtype=torch.bfloat16) * 0.4)(P) * 0.3 - 2.0
        Dskip = (lambda *s: torch.randn(*s, dtype=torch.bfloat16) * 0.1)(D)
        return {
            "x": _w((lambda *s: torch.randn(*s, dtype=torch.bfloat16) * 0.05)(B, S, D)),
            "Lambda_re": _w(Lambda_re),
            "Lambda_im": _w(Lambda_im),
            "B_re": _w(B_re),
            "B_im": _w(B_im),
            "C_re": _w(C_re),
            "C_im": _w(C_im),
            "log_dt": _w(log_dt),
            "Dskip": _w(Dskip),
        }
    _A_in = _A_setup()

    def _B_setup():
        B, S, D, H = 1, 2048, 576, 32
        return {
            "x": _w((lambda *s: torch.randn(*s, dtype=torch.bfloat16) * 0.2)(B, S, D)),
            "wqkv": _w((lambda *s: torch.randn(*s, dtype=torch.bfloat16) * 0.2)(D, 3 * D)),
            "wo": _w((lambda *s: torch.randn(*s, dtype=torch.bfloat16) * 0.05)(D, D)),
        }
    _B_in = _B_setup()

    return {
        "A_x": _A_in["x"],
        "A_Lambda_re": _A_in["Lambda_re"],
        "A_Lambda_im": _A_in["Lambda_im"],
        "A_B_re": _A_in["B_re"],
        "A_B_im": _A_in["B_im"],
        "A_C_re": _A_in["C_re"],
        "A_C_im": _A_in["C_im"],
        "A_log_dt": _A_in["log_dt"],
        "A_Dskip": _A_in["Dskip"],
        "B_x": _B_in["x"],
        "B_wqkv": _B_in["wqkv"],
        "B_wo": _B_in["wo"],
    }

def reference(A_x, A_Lambda_re, A_Lambda_im, A_B_re, A_B_im, A_C_re, A_C_im, A_log_dt, A_Dskip, B_x, B_wqkv, B_wo):
    def _A_ref(x, Lambda_re, Lambda_im, B_re, B_im, C_re, C_im, log_dt, Dskip):
        Bsz, L, H = x.shape
        Lam = Lambda_re + 1j * Lambda_im
        Bmat = B_re + 1j * B_im
        Cmat = C_re + 1j * C_im
        dt = torch.exp(log_dt)
        Lam_bar = torch.exp(dt * Lam)
        B_bar = ((Lam_bar - 1.0) / Lam)[:, None] * Bmat
        Bu = torch.einsum("bld,pd->blp", x + 0j, B_bar)
        h = torch.zeros_like(Bu[:, 0, :])
        hs = []
        for t in range(L):
            h = Lam_bar[None, :] * h + Bu[:, t, :]
            hs.append(h)
        hseq = torch.stack(hs, 1)
        y = 2.0 * torch.einsum("blp,dp->bld", hseq, Cmat).real + x * Dskip[None, None, :]
        return y

    def _B_ref(x, wqkv, wo):
        B, S, D = x.shape
        H = 32
        Dh = D // H
        qkv = (lambda x, *d: x.permute(*d))((x @ wqkv).reshape(B, S, 3, H, Dh), 2, 0, 3, 1, 4)
        q, k, v = qkv[0], qkv[1], qkv[2]
        scores = torch.einsum("bhqd,bhkd->bhqk", q, k) * (Dh ** -0.5)
        p = _softmax(scores, axis=-1)
        o = torch.einsum("bhqk,bhkd->bhqd", p, v)
        return (lambda x, *d: x.permute(*d))(o, 0, 2, 1, 3).reshape(B, S, D) @ wo

    a = _A_ref(A_x, A_Lambda_re, A_Lambda_im, A_B_re, A_B_im, A_C_re, A_C_im, A_log_dt, A_Dskip)
    b = _B_ref(B_x, B_wqkv, B_wo)
    return torch.concatenate([a, b], axis=-1)
```

```python
from asmlib import *
from layout import *
from nt import *

LOG2E = math.log2(math.e)
A1_NS = 4; A1_NSTG = 18
A1_LDS = A1_NS * (8192 + 128*64)

def lambda_setup(a, vP2, dstLr, dstLi, tmp, srd_lre, srd_lim, srd_ldt, want_coef=None):
    t0,t1,t2,t3,t4,t5 = tmp[:6]
    a(f"""
    buffer_load_ushort {vr(t0)}, {vr(vP2)}, s[{srd_lre}:{srd_lre+3}], 0 offen
    buffer_load_ushort {vr(t1)}, {vr(vP2)}, s[{srd_lim}:{srd_lim+3}], 0 offen
    buffer_load_ushort {vr(t2)}, {vr(vP2)}, s[{srd_ldt}:{srd_ldt+3}], 0 offen
    s_waitcnt vmcnt(0)
    v_lshlrev_b32 {vr(t0)}, 16, {vr(t0)}          ; Lre
    v_lshlrev_b32 {vr(t1)}, 16, {vr(t1)}          ; Lim
    v_lshlrev_b32 {vr(t2)}, 16, {vr(t2)}          ; log_dt
    """)
    lam_from_regs(a, t0, t1, t2, dstLr, dstLi, (t3, t4, t5), want_coef)

def lam_from_regs(a, rLre, rLim, rLdt, dstLr, dstLi, tmp, want_coef=None):
    t3,t4,t5 = tmp[:3]
    a(f"""
    v_mul_f32 {vr(rLdt)}, {hex(f2u(LOG2E))}, {vr(rLdt)}
    v_exp_f32 {vr(rLdt)}, {vr(rLdt)}
    s_nop 0
    v_cvt_pk_bf16_f32 {vr(rLdt)}, {vr(rLdt)}, {vr(rLdt)}
    v_and_b32 {vr(rLdt)}, 0xffff0000, {vr(rLdt)}
    v_mul_f32 {vr(t3)}, {vr(rLdt)}, {vr(rLre)}      ; dt*Lre
    v_mul_f32 {vr(t4)}, {vr(rLdt)}, {vr(rLim)}      ; dt*Lim
    v_mul_f32 {vr(t3)}, {hex(f2u(LOG2E))}, {vr(t3)}
    v_exp_f32 {vr(t3)}, {vr(t3)}                    ; magnitude
    v_mul_f32 {vr(t4)}, 0.15915494, {vr(t4)}        ; revolutions
    v_fract_f32 {vr(t4)}, {vr(t4)}
    v_cos_f32 {vr(t5)}, {vr(t4)}
    v_sin_f32 {vr(t4)}, {vr(t4)}
    s_nop 0
    v_mul_f32 {vr(dstLr)}, {vr(t3)}, {vr(t5)}
    v_mul_f32 {vr(dstLi)}, {vr(t3)}, {vr(t4)}
    """)
    if want_coef:
        cr, ci = want_coef
        a(f"""
        v_add_f32 {vr(t3)}, -1.0, {vr(dstLr)}          ; nr
        v_mul_f32 {vr(t4)}, {vr(rLre)}, {vr(rLre)}
        v_fma_f32 {vr(t4)}, {vr(rLim)}, {vr(rLim)}, {vr(t4)}
        v_rcp_f32 {vr(t4)}, {vr(t4)}
        v_mul_f32 {vr(cr)}, {vr(t3)}, {vr(rLre)}
        v_fma_f32 {vr(cr)}, {vr(dstLi)}, {vr(rLim)}, {vr(cr)}
        v_mul_f32 {vr(ci)}, {vr(dstLi)}, {vr(rLre)}
        v_fma_f32 {vr(ci)}, -{vr(t3)}, {vr(rLim)}, {vr(ci)}
        v_mul_f32 {vr(cr)}, {vr(cr)}, {vr(t4)}
        v_mul_f32 {vr(ci)}, {vr(ci)}, {vr(t4)}
        """)

def csq(a, dr, di, sr_, si, tmp):
    a(f"""
    v_mul_f32 {vr(tmp)}, {vr(sr_)}, {vr(si)}
    v_mul_f32 {vr(dr)}, {vr(sr_)}, {vr(sr_)}
    v_fma_f32 {vr(dr)}, -{vr(si)}, {vr(si)}, {vr(dr)}
    v_add_f32 {vr(di)}, {vr(tmp)}, {vr(tmp)}
    """)

def cmad(a, dr, di, lr, li, pr, pi, ur, ui):
    a(f"""
    v_fma_f32 {vr(dr)}, {vr(lr)}, {vr(pr)}, {vr(ur)}
    v_fma_f32 {vr(di)}, {vr(lr)}, {vr(pi)}, {vr(ui)}
    v_fma_f32 {vr(dr)}, -{vr(li)}, {vr(pi)}, {vr(dr)}
    v_fma_f32 {vr(di)}, {vr(li)}, {vr(pr)}, {vr(di)}
    """)

def gen_a1(a, wg="s2", stamp=False, signal_h=False):
    R = Regs(start=1, limit=128)
    nt = NT(a, R, 128, A1_NS, A1_NSTG, "a1")
    if stamp: stamp_begin(a)
    a(f"""
    s_load_dwordx2 s[4:5], s[0:1], 0
    s_load_dwordx4 s[8:11], s[0:1], 8
    s_load_dwordx4 s[12:15], s[0:1], 24
    s_load_dwordx2 s[16:17], s[0:1], 56      ; log_dt
    s_load_dwordx4 s[60:63], s[0:1], 104
    s_and_b32 s26, {wg}, 15                   ; rt
    s_lshr_b32 s27, {wg}, 4                   ; pg
    """)
    vL, t = lane_consts(a, R)
    L_ld = a.label("a1_loader"); L_exit = a.label("a1_exit")
    def srd(d, lo, size):
        a(f"s_mov_b32 s{d}, s{lo}\ns_and_b32 s{d+1}, s{lo+1}, 0xffff\ns_mov_b32 s{d+2}, {size}\ns_mov_b32 s{d+3}, 0x20000")
    a("s_waitcnt lgkmcnt(0)")
    a(f"s_cmp_ge_u32 s20, 4\ns_cbranch_scc1 {L_ld}")
    ACC = [[R.alloc(f"ACC{j}{b}", 16) for b in range(2)] for j in range(2)]
    lr = R.alloc("lr"); li = R.alloc("li"); l32r = R.alloc("l32r"); l32i = R.alloc("l32i"); l64r = R.alloc("l64r"); l64i = R.alloc("l64i")
    vP = R.alloc("vP")
    tt0 = R.alloc("tt", 6, align=2)
    tt = [tt0 + i for i in range(6)]
    srd(32, 8, 1152); srd(36, 10, 1152); srd(40, 16, 1152)
    a(f"""
    s_lshr_b32 s28, s20, 1            ; th
    s_and_b32 s29, s20, 1             ; pb
    s_lshl_b32 s30, s27, 6
    s_lshl_b32 s31, s29, 5
    s_add_u32 s30, s30, s31
    v_and_b32 {vr(vP)}, 31, {vr(vL)}
    v_add_u32 {vr(vP)}, s30, {vr(vP)}              ; p
    v_lshlrev_b32 {vr(tt[5])}, 1, {vr(vP)}
    """)
    lambda_setup(a, tt[5], lr, li, [tt[0], tt[1], tt[2], tt[3], tt[4], t[3]], 32, 36, 40)
    csq(a, l32r, l32i, lr, li, tt[0])
    for _ in range(4): csq(a, l32r, l32i, l32r, l32i, tt[0])
    csq(a, l64r, l64i, l32r, l32i, tt[0])
    for j in range(2):
        for b in range(2):
            for i in range(16): a(f"v_mov_b32 {vr(ACC[j][b]+i)}, 0")
    a(f"s_lshl_b32 s28, s28, 12        ; th*4096\ns_lshl_b32 s29, s29, 11        ; pb*2048")
    mark = R.next
    compute_loop(a, nt, R, vL, t, 28, [(29, 0), (29, 4096)], [(0,0),(0,1),(1,0),(1,1)], ACC)
    if stamp: stamp_mark(a, 0)
    R.next = mark
    RE = [ACC[0][0], ACC[1][0]]; IM = [ACC[0][1], ACC[1][1]]
    er = R.alloc("er"); ei = R.alloc("ei"); e2r = R.alloc("e2r"); e2i = R.alloc("e2i")
    gr = R.alloc("gr"); gi = R.alloc("gi")
    EL = R.alloc("EL", 32)
    seq = [(j, i) for j in range(2) for i in range(16)]
    a(f"v_mov_b32 {vr(er)}, {vr(RE[0])}\nv_mov_b32 {vr(ei)}, {vr(IM[0])}")
    cur = (er, ei); oth = (e2r, e2i)
    for (j, i) in seq[1:]:
        cmad(a, oth[0], oth[1], lr, li, cur[0], cur[1], RE[j]+i, IM[j]+i)
        cur, oth = oth, cur
    Er, Ei = cur; Fr, Fi = oth
    a(f"""
    v_mov_b32 {vr(Fr)}, {vr(Er)}
    v_mov_b32 {vr(Fi)}, {vr(Ei)}
    s_nop 1
    v_permlane32_swap_b32 {vr(Er)}, {vr(Fr)}
    v_permlane32_swap_b32 {vr(Ei)}, {vr(Fi)}
    s_nop 1
    """)
    cmad(a, tt[0], tt[1], l32r, l32i, Er, Ei, Fr, Fi)
    srd(32, 62, WS_END)
    a(f"""
    s_add_u32 s36, s62, {WS_E}
    s_addc_u32 s37, s63, 0
    s_and_b32 s37, s37, 0xffff
    s_mov_b32 s38, {32*576*8}
    s_mov_b32 s39, 0x20000
    s_lshr_b32 s28, s20, 1
    s_lshl_b32 s44, s26, 1
    s_add_u32 s44, s44, s28            ; chunk c = 2rt + th
    s_mul_i32 s45, s44, 576
    v_add_u32 {vr(tt[2])}, s45, {vr(vP)}
    v_lshlrev_b32 {vr(tt[2])}, 3, {vr(tt[2])}     ; (c*576 + p)*8
    s_mov_b32 exec_hi, 0
    buffer_store_dwordx2 {vr(tt[0],2)}, {vr(tt[2])}, s[36:39], 0 offen sc1
    s_mov_b64 exec, -1
    s_lshr_b32 s46, s30, 5             ; p block 0..17
    s_lshl_b32 s46, s46, 2
    v_mov_b32 {vr(tt[3])}, s46
    v_mov_b32 {vr(tt[4])}, 1
    s_waitcnt vmcnt(0)
    s_mov_b64 exec, 1
    global_atomic_add {vr(tt[3])}, {vr(tt[4])}, s[60:61]
    s_mov_b64 exec, -1
    """.replace("v_mov_b32 {vr(tt[0],2)}", ""))
    Lp = a.label("a1_poll")
    a(f"""
    s_mov_b32 s48, 0
    {Lp}:
    global_load_dword {vr(tt[4])}, {vr(tt[3])}, s[60:61] sc1
    s_waitcnt vmcnt(0)
    v_readfirstlane_b32 s47, {vr(tt[4])}
    s_cmp_ge_u32 s47, 32
    s_cbranch_scc1 {Lp}_ok
    s_sleep 2
    s_add_u32 s48, s48, 1
    s_cmp_lt_u32 s48, 200000
    s_cbranch_scc1 {Lp}
    {Lp}_ok:
    """)
    if stamp: stamp_mark(a, 1)
    a(f"""
    v_subrev_u32 {vr(tt[2])}, {31*4608}, {vr(tt[2])}      ; index c-31  (k = 30)
    v_mov_b32 {vr(gr)}, 0
    v_mov_b32 {vr(gi)}, 0
    """)
    cur = (gr, gi); oth = (tt[0], tt[1])
    for batch in range(2):
        n = 16 if batch == 0 else 15
        for k in range(n):
            a(f"buffer_load_dwordx2 {vr(EL+2*k,2)}, {vr(tt[2])}, s[36:39], 0 offen sc1\nv_add_u32 {vr(tt[2])}, 4608, {vr(tt[2])}")
        for k in range(n):
            a(f"s_waitcnt vmcnt({n-1-k})")
            cmad(a, oth[0], oth[1], l64r, l64i, cur[0], cur[1], EL+2*k, EL+2*k+1)
            cur, oth = oth, cur
    Gr, Gi = cur
    a(f"v_cmp_gt_u32 vcc, 32, {vr(vL)}")
    cmad(a, oth[0], oth[1], l32r, l32i, Gr, Gi, Er, Ei)
    a(f"""
    v_cndmask_b32 {vr(Gr)}, {vr(oth[0])}, {vr(Gr)}, vcc
    v_cndmask_b32 {vr(Gi)}, {vr(oth[1])}, {vr(Gi)}, vcc
    """)
    a(f"""
    v_lshrrev_b32 {vr(tt[2])}, 5, {vr(vL)}
    v_mul_u32_u24 {vr(tt[2])}, {32*2304}, {vr(tt[2])}
    v_lshlrev_b32 {vr(tt[3])}, 2, {vr(vP)}
    v_add_u32 {vr(tt[2])}, {vr(tt[2])}, {vr(tt[3])}        ; hh*32*2304 + p*4
    s_lshl_b32 s45, s44, 6                                  ; t0 = 64c
    s_mul_i32 s45, s45, 2304
    s_add_u32 s45, s45, {WS_H}
    """)
    pr, pi = Gr, Gi
    for n_, (j, i) in enumerate(seq):
        cmad(a, RE[j]+i, IM[j]+i, lr, li, pr, pi, RE[j]+i, IM[j]+i)
        pr, pi = RE[j]+i, IM[j]+i
        d = EL + (n_ % 16)
        a(f"""
        v_cvt_pk_bf16_f32 {vr(d)}, {vr(pr)}, {vr(pi)}
        buffer_store_dword {vr(d)}, {vr(tt[2])}, s[32:35], s45 offen sc1
        s_add_u32 s45, s45, 2304
        """)
    if signal_h:
        a(f"""
        s_waitcnt vmcnt(0)
        s_lshl_b32 s46, s26, 2
        s_add_u32 s46, s46, 128
        v_mov_b32 {vr(tt[3])}, s46
        v_mov_b32 {vr(tt[4])}, 1
        s_mov_b64 exec, 1
        global_atomic_add {vr(tt[3])}, {vr(tt[4])}, s[60:61]
        s_mov_b64 exec, -1
        """)
    a(f"s_branch {L_exit}")
    nv = R.next
    a(f"{L_ld}:")
    vOA = R.alloc("vOA"); vOB = R.alloc("vOB")
    srd(28, 4, 2048*1152); srd(32, 12, 576*1152); srd(36, 14, 576*1152)
    a(f"""
    s_sub_u32 s21, s20, 4              ; lw
    v_and_b32 {vr(t[0])}, 3, {vr(vL)}
    v_lshrrev_b32 {vr(t[1])}, 4, {vr(vL)}
    v_xor_b32 {vr(t[0])}, {vr(t[0])}, {vr(t[1])}
    v_lshlrev_b32 {vr(t[0])}, 4, {vr(t[0])}           ; c*16
    v_lshrrev_b32 {vr(t[1])}, 2, {vr(vL)}             ; ri
    v_mul_u32_u24 {vr(t[2])}, 1152, {vr(t[1])}
    v_add_u32 {vr(vOB)}, {vr(t[2])}, {vr(t[0])}
    v_lshrrev_b32 {vr(t[2])}, 2, {vr(t[1])}
    v_and_b32 {vr(t[2])}, 1, {vr(t[2])}
    v_lshlrev_b32 {vr(t[2])}, 5, {vr(t[2])}
    v_lshrrev_b32 {vr(t[3])}, 3, {vr(t[1])}
    v_lshlrev_b32 {vr(t[3])}, 2, {vr(t[3])}
    v_add_u32 {vr(t[2])}, {vr(t[2])}, {vr(t[3])}
    v_and_b32 {vr(t[3])}, 3, {vr(t[1])}
    v_add_u32 {vr(t[2])}, {vr(t[2])}, {vr(t[3])}
    v_mul_u32_u24 {vr(t[2])}, 1152, {vr(t[2])}
    v_add_u32 {vr(vOA)}, {vr(t[2])}, {vr(t[0])}
    ; soffsets
    s_lshl_b32 s44, s26, 7             ; t0 = 128 rt
    s_lshr_b32 s45, s21, 1
    s_lshl_b32 s45, s45, 4
    s_add_u32 s44, s44, s45
    s_and_b32 s45, s21, 1
    s_lshl_b32 s45, s45, 3
    s_add_u32 s44, s44, s45
    s_mul_i32 s44, s44, 1152
    s_add_u32 s45, s44, {64*1152}
    s_lshl_b32 s46, s27, 6
    s_lshl_b32 s47, s21, 4
    s_add_u32 s46, s46, s47
    s_mul_i32 s46, s46, 1152
    s_mov_b32 s47, s46
    """)
    loader(a, nt, vOA, vOB, [28, 28], [44, 45], [32, 36], [46, 47], L_exit)
    a(f"{L_exit}:")
    if stamp:
        a("s_waitcnt vmcnt(0)")
        stamp_end(a, 104)
    a("s_endpgm")
    return max(nv, R.next)
```

```python
class Asm:
    def __init__(self):
        self.lines = []
        self.uid = 0
    def __call__(self, s):
        for l in s.split("\n"):
            l = l.strip()
            if l: self.lines.append("  " + l if not l.endswith(":") else l)
    def raw(self, s):
        self.lines.append(s)
    def label(self, base):
        self.uid += 1
        return f"L_{base}_{self.uid}"
    def text(self):
        return "\n".join(self.lines) + "\n"

def vr(base, n=1):
    return f"v{base}" if n == 1 else f"v[{base}:{base+n-1}]"
def sr(base, n=1):
    return f"s{base}" if n == 1 else f"s[{base}:{base+n-1}]"

class Regs:
    def __init__(self, start=0, limit=256):
        self.next = start; self.limit = limit; self.names = {}
    def alloc(self, name, n=1, align=None):
        if align is None: align = 1 if n == 1 else (2 if n == 2 else 4)
        b = (self.next + align - 1) // align * align
        self.next = b + n
        assert self.next <= self.limit, f"out of regs at {name}: {self.next}"
        self.names[name] = (b, n)
        return b

def kernel_desc(name, vgprs, sgprs=102, accum=None, wgid_y=False):
    if accum is None: accum = (vgprs + 3) // 4 * 4
    s = f""".p2align 6
.amdhsa_kernel {name}
  .amdhsa_next_free_vgpr {vgprs}
  .amdhsa_next_free_sgpr {sgprs}
  .amdhsa_accum_offset {accum}
  .amdhsa_group_segment_fixed_size 0
  .amdhsa_kernarg_size 120
  .amdhsa_user_sgpr_count 2
  .amdhsa_user_sgpr_kernarg_segment_ptr 1
  .amdhsa_system_sgpr_workgroup_id_x 1
  .amdhsa_float_denorm_mode_32 3
  .amdhsa_float_denorm_mode_16_64 3
  .amdhsa_ieee_mode 0
  .amdhsa_dx10_clamp 1
.end_amdhsa_kernel
"""
    return s

def stamp_begin(a):
    a("s_memrealtime s[90:91]\ns_memtime s[92:93]\ns_load_dwordx2 s[88:89], s[0:1], 104\ns_mov_b32 s94, 0\ns_mov_b32 s95, 0\ns_mov_b32 s96, 0\ns_mov_b32 s97, 0")
def stamp_mark(a, idx):
    a(f"s_memtime s[86:87]\ns_waitcnt lgkmcnt(0)\ns_sub_u32 s{94+idx}, s86, s92")
def stamp_end(a, vtmp):
    a(f"""
    s_memrealtime s[84:85]
    s_memtime s[86:87]
    s_waitcnt lgkmcnt(0)
    s_sub_u32 s86, s86, s92
    v_lshrrev_b32 v{vtmp+8}, 6, v0
    s_lshl_b32 s85, s2, 4
    v_add_u32 v{vtmp+8}, s85, v{vtmp+8}
    v_lshlrev_b32 v{vtmp+8}, 5, v{vtmp+8}
    v_mov_b32 v{vtmp}, s90
    v_mov_b32 v{vtmp+1}, s84
    v_mov_b32 v{vtmp+2}, s86
    v_mov_b32 v{vtmp+3}, s94
    v_mov_b32 v{vtmp+4}, s95
    v_mov_b32 v{vtmp+5}, s96
    v_mov_b32 v{vtmp+6}, s97
    v_mov_b32 v{vtmp+7}, 0
    s_mov_b64 s[82:83], exec
    s_mov_b64 exec, 1
    global_store_dwordx4 v{vtmp+8}, v[{vtmp}:{vtmp+3}], s[88:89] offset:1024
    global_store_dwordx4 v{vtmp+8}, v[{vtmp+4}:{vtmp+7}], s[88:89] offset:1040
    s_mov_b64 exec, s[82:83]
    """)
```

```python
from asmlib import *
from layout import *

def gen_attn(a, stamp=False, exp=()):
    R = Regs(start=1, limit=128)
    vL = R.alloc("lane"); vL16 = R.alloc("l16")
    vT = R.alloc("tmp0"); vT2 = R.alloc("tmp1"); vT3 = R.alloc("tmp2")
    aK1 = R.alloc("aK1"); aK2 = R.alloc("aK2"); aV = R.alloc("aV")
    lK1 = R.alloc("lK1"); lK2 = R.alloc("lK2"); lV = R.alloc("lV")
    Q1 = [R.alloc("Q1A", 4), R.alloc("Q1B", 4)]; Q2 = [R.alloc("Q2A", 4), R.alloc("Q2B", 4)]
    KA = R.alloc("KA", 4); KB = R.alloc("KB", 4)
    VA = [R.alloc("VA0", 4), R.alloc("VA1", 4)]
    VB = [R.alloc("VB0", 4), R.alloc("VB1", 4)]
    P = R.alloc("P", 8)
    vCA = R.alloc("cntaddr"); vOne = vT3; vPoll = vT2
    O = [R.alloc("OA", 16), R.alloc("OB", 16)]
    Sb = [R.alloc("SA", 16), R.alloc("SB", 16)]
    nv = R.next
    T = TILE_KV; SLOT = 8 * T
    NL3 = (T - 2048) // 16
    MF = "v_mfma_f32_32x32x16_bf16"
    L_stage = a.label("attn_stage"); L_nodma = a.label("attn_nodma"); L_bar = a.label("attn_bar")
    L_fall = a.label("attn_fallback"); L_store = a.label("attn_store")
    if stamp: a("s_memtime s[44:45]\ns_memrealtime s[46:47]\ns_load_dwordx2 s[42:43], s[0:1], 104")
    a(f"""
    s_load_dwordx2 s[4:5], s[0:1], 112
    v_and_b32 {vr(vL)}, 63, v0
    v_lshrrev_b32 {vr(vT)}, 6, v0
    v_lshlrev_b32 {vr(vL16)}, 4, {vr(vL)}
    v_readfirstlane_b32 s14, {vr(vT)}
    s_and_b32 s12, s2, 7
    s_lshr_b32 s13, s2, 3
    s_and_b32 s13, s13, 3
    s_lshl_b32 s13, s13, 3
    s_add_u32 s12, s12, s13          ; h
    s_lshr_b32 s13, s2, 5
    s_mul_i32 s15, s12, {64*T}
    s_add_u32 s15, s15, {WS_KV}
    s_and_b32 s19, s14, 3            ; q-group g
    s_lshr_b32 s23, s14, 2
    s_lshl_b32 s17, s23, 5
    s_add_u32 s17, s17, s19
    s_mul_i32 s17, s17, {T}
    s_add_u32 s17, s17, s15
    s_mul_i32 s18, s14, {T}
    s_lshl_b32 s21, s13, 3
    s_lshl_b32 s40, s19, 1
    s_add_u32 s21, s21, s40
    s_lshl_b32 s22, s12, 6
    s_add_u32 s22, s22, s21
    s_mul_i32 s22, s22, {TILE_Q}
    s_lshl_b32 s40, s12, 6
    v_and_b32 {vr(vT)}, 31, {vr(vL)}
    v_lshlrev_b32 {vr(lK2)}, 2, {vr(vT)}         ; (l&31)*4
    s_waitcnt lgkmcnt(0)
    s_mov_b32 s8, s4
    s_and_b32 s9, s5, 0xffff
    s_mov_b32 s10, {WS_END}
    s_mov_b32 s11, 0x20000
    """)
    def dma_stage():
        a(f"""
        s_mov_b32 m0, s18
        s_mov_b64 exec, {hex((1<<NL3)-1)}
        buffer_load_dwordx4 {vr(vL16)}, s[8:11], s17 offen offset:2048 lds
        s_mov_b64 exec, -1
        buffer_load_dwordx4 {vr(vL16)}, s[8:11], s17 offen lds
        buffer_load_dwordx4 {vr(vL16)}, s[8:11], s17 offen offset:1024 lds
        """)
    dma_stage()
    a(f"""
    s_add_u32 s17, s17, {4*T}
    s_add_u32 s18, s18, {SLOT}
    buffer_load_dwordx4 {vr(Q1[0],4)}, {vr(vL16)}, s[8:11], s22 offen
    buffer_load_dword {vr(Q2[0])}, {vr(lK2)}, s[8:11], s22 offen offset:1024
    buffer_load_dwordx4 {vr(Q1[1],4)}, {vr(vL16)}, s[8:11], s22 offen offset:{TILE_Q}
    buffer_load_dword {vr(Q2[1])}, {vr(lK2)}, s[8:11], s22 offen offset:{TILE_Q+1024}
    s_add_u32 s6, s4, s40
    s_addc_u32 s7, s5, 0
    s_add_u32 s6, s6, {WS_KMAX}
    s_addc_u32 s7, s7, 0
    s_load_dwordx16 s[24:39], s[6:7], 0
    """)
    for st in range(2):
        dma_stage()
        a(f"s_add_u32 s17, s17, {4*T}\ns_add_u32 s18, s18, {SLOT}")
    a(f"""
    s_mul_i32 s41, s23, {4*T}
    v_add_u32 {vr(lK1)}, s41, {vr(vL16)}
    v_add_u32 {vr(lK2)}, 1024, {vr(lK2)}
    v_add_u32 {vr(lK2)}, s41, {vr(lK2)}
    v_min_u32 {vr(vT3)}, 19, {vr(vT)}
    v_lshlrev_b32 {vr(vT3)}, 4, {vr(vT3)}
    v_lshrrev_b32 {vr(vT2)}, 5, {vr(vL)}          ; hh
    v_mul_u32_u24 {vr(vT2)}, {VHH}, {vr(vT2)}
    v_add_u32 {vr(lV)}, {vr(vT3)}, {vr(vT2)}
    v_add_u32 {vr(lV)}, 1152, {vr(lV)}
    v_add_u32 {vr(aV)}, s41, {vr(lV)}
    v_mov_b32 {vr(aK1)}, {vr(lK1)}
    v_mov_b32 {vr(aK2)}, {vr(lK2)}
    s_mov_b32 s20, 0
    s_lshl_b32 s41, s23, 2
    s_add_u32 s41, s41, {4*SLOT}
    v_mov_b32 {vr(vCA)}, s41
    s_mul_i32 s41, s23, {4*T}
    v_mov_b32 {vr(KB+1)}, 0x3f80
    v_mov_b32 {vr(KB+2)}, 0
    v_mov_b32 {vr(KB+3)}, 0
    """)
    for b in range(2):
        for i in range(16): a(f"v_mov_b32 {vr(O[b]+i)}, 0")
        a(f"v_mov_b32 {vr(Q2[b]+2)}, 0\nv_mov_b32 {vr(Q2[b]+3)}, 0")
    for i in range(4): a(f"v_mov_b32 {vr(VB[1]+i)}, 0\nv_mov_b32 {vr(P+4+i)}, 0")
    a("s_waitcnt lgkmcnt(0)")
    for i in range(1, 16): a(f"s_max_u32 s24, s24, s{24+i}")
    a(f"""
    s_waitcnt vmcnt(6)
    v_cmp_gt_u32 vcc, 32, {vr(vL)}              ; lanes < 32
    v_mov_b32 {vr(vT2)}, 0
    """)
    for b in range(2):
        a(f"""
        s_nop 0
        v_cndmask_b32 {vr(Q2[b])}, {vr(vT2)}, {vr(Q2[b])}, vcc
        v_mov_b32 {vr(vT)}, 0
        v_dot2_f32_bf16 {vr(vT)}, {vr(Q1[b])}, {vr(Q1[b])}, {vr(vT)}
        v_dot2_f32_bf16 {vr(vT)}, {vr(Q1[b]+1)}, {vr(Q1[b]+1)}, {vr(vT)}
        v_dot2_f32_bf16 {vr(vT)}, {vr(Q1[b]+2)}, {vr(Q1[b]+2)}, {vr(vT)}
        v_dot2_f32_bf16 {vr(vT)}, {vr(Q1[b]+3)}, {vr(Q1[b]+3)}, {vr(vT)}
        v_dot2_f32_bf16 {vr(vT)}, {vr(Q2[b])}, {vr(Q2[b])}, {vr(vT)}
        s_nop 2
        v_mov_b32 {vr(vT3)}, {vr(vT)}
        s_nop 1
        v_permlane32_swap_b32 {vr(vT)}, {vr(vT3)}
        s_nop 1
        v_add_f32 {vr(vT)}, {vr(vT)}, {vr(vT3)}      ; |q|^2
        v_mul_f32 {vr(vT)}, s24, {vr(vT)}
        v_sqrt_f32 {vr(vT)}, {vr(vT)}
        s_nop 0
        v_mul_f32 {vr(vT)}, 0x3f810000, {vr(vT)}     ; * (1+2^-7)
        v_add_u32 {vr(vT)}, 0xffff, {vr(vT)}
        v_lshrrev_b32 {vr(vT)}, 16, {vr(vT)}
        v_or_b32 {vr(vT)}, 0x8000, {vr(vT)}
        v_cndmask_b32 {vr(Q2[b]+1)}, {vr(vT2)}, {vr(vT)}, vcc
        """)
    if 'hb' in exp:
        a(f"v_mov_b32 {vr(vT)}, 0\nds_write_b32 {vr(vCA)}, {vr(vT)}\ns_waitcnt lgkmcnt(0)\ns_mov_b32 s55, 4\nv_mov_b32 {vr(vOne)}, 1")
    a(f"""
    s_barrier
    ds_read_b128 {vr(KA,4)}, {vr(aK1)}
    ds_read_b32 {vr(KB)}, {vr(aK2)}
    ds_read_b128 {vr(VA[0],4)}, {vr(aV)}
    ds_read_b128 {vr(VB[0],4)}, {vr(aV)} offset:{VJ}
    s_waitcnt lgkmcnt(0)
    {MF} {vr(Sb[0],16)}, {vr(KA,4)}, {vr(Q1[0],4)}, 0
    {MF} {vr(Sb[0],16)}, {vr(KB,4)}, {vr(Q2[0],4)}, {vr(Sb[0],16)}
    s_mov_b32 s16, 0
    s_nop 15
    """)
    a(f"v_add_u32 {vr(lV)}, s41, {vr(lV)}")
    if 'prio' in exp: a("s_setprio 3")
    if stamp: a("s_memtime s[48:49]\ns_waitcnt lgkmcnt(0)")
    a(f"{L_stage}:")
    def E(S_, g):
        b = S_ + 4*g; p = P + 2*g
        a(f"""
        v_exp_f32 {vr(b)}, {vr(b)}
        v_exp_f32 {vr(b+1)}, {vr(b+1)}
        v_exp_f32 {vr(b+2)}, {vr(b+2)}
        v_exp_f32 {vr(b+3)}, {vr(b+3)}
        v_cvt_pk_bf16_f32 {vr(p)}, {vr(b)}, {vr(b+1)}
        v_cvt_pk_bf16_f32 {vr(p+1)}, {vr(b+2)}, {vr(b+3)}
        """)
    SA, SB = Sb; OA, OB = O
    spread = 'burst' not in exp
    if spread:
        a("s_cmp_lt_u32 s16, 5\ns_mov_b32 m0, s18")
    for tt in range(4):
        cur = tt & 1; nxt = cur ^ 1
        if 'prio' in exp and tt > 0: a(f"s_setprio {3-tt}")
        a(f"{MF} {vr(SB,16)}, {vr(KA,4)}, {vr(Q1[1],4)}, 0")
        if spread and tt < 3 and 'nobar' not in exp:
            Ls = a.label("skipdma")
            a(f"s_cbranch_scc0 {Ls}")
            if tt == 0:
                a(f"""
                s_mov_b64 exec, {hex((1<<NL3)-1)}
                buffer_load_dwordx4 {vr(vL16)}, s[8:11], s17 offen offset:2048 lds
                s_mov_b64 exec, -1
                """)
            else:
                a(f"buffer_load_dwordx4 {vr(vL16)}, s[8:11], s17 offen offset:{(tt-1)*1024} lds")
            a(f"{Ls}:")
        E(SA, 0)
        hb = 'hb' in exp
        a(f"{MF} {vr(SB,16)}, {vr(KB,4)}, {vr(Q2[1],4)}, {vr(SB,16)}")
        if hb and tt == 3: a(f"ds_read_b32 {vr(vPoll)}, {vr(vCA)}")
        E(SA, 1)
        a(f"{MF} {vr(OB,16)}, {vr(VB[nxt],4)}, {vr(P+4,4)}, {vr(OB,16)}")
        if tt == 3 and hb:
            Lok = a.label("hb_ok"); Lsp = a.label("hb_spin")
            a(f"""
            s_waitcnt lgkmcnt(0)
            v_readfirstlane_b32 s40, {vr(vPoll)}
            s_cmp_ge_u32 s40, s55
            s_cbranch_scc1 {Lok}
            {Lsp}:
            ds_read_b32 {vr(vPoll)}, {vr(vCA)}
            s_waitcnt lgkmcnt(0)
            v_readfirstlane_b32 s40, {vr(vPoll)}
            s_cmp_ge_u32 s40, s55
            s_cbranch_scc0 {Lsp}
            {Lok}:
            s_add_u32 s55, s55, 4
            s_add_u32 s17, s17, {4*T}
            s_add_u32 s18, s18, {SLOT}
            s_sub_u32 s40, s18, {4*SLOT}
            s_cmp_ge_u32 s18, {4*SLOT}
            s_cselect_b32 s18, s40, s18
            """)
        if tt == 3:
            if 'nobar' not in exp and not hb:
                if spread:
                    L6 = a.label("w6"); Lb = a.label("wb")
                    a(f"""
                    s_cmp_lt_u32 s16, 5
                    s_cbranch_scc1 {L6}
                    s_waitcnt vmcnt(0)
                    {L6}:
                    s_waitcnt vmcnt(6)
                    s_barrier
                    s_add_u32 s17, s17, {4*T}
                    s_add_u32 s18, s18, {SLOT}
                    s_sub_u32 s40, s18, {4*SLOT}
                    s_cmp_ge_u32 s18, {4*SLOT}
                    s_cselect_b32 s18, s40, s18
                    """)
                else:
                    a(f"""
                    s_cmp_ge_u32 s16, 6
                    s_cbranch_scc1 {L_nodma}
                    s_waitcnt vmcnt(3)
                    s_barrier
                    s_cmp_ge_u32 s16, 5
                    s_cbranch_scc1 {L_bar}
                    """)
                    dma_stage()
                    a(f"""
                    s_add_u32 s17, s17, {4*T}
                    s_add_u32 s18, s18, {SLOT}
                    s_sub_u32 s40, s18, {4*SLOT}
                    s_cmp_ge_u32 s18, {4*SLOT}
                    s_cselect_b32 s18, s40, s18
                    s_branch {L_bar}
                    {L_nodma}:
                    s_waitcnt vmcnt(0)
                    s_barrier
                    {L_bar}:
                    """)
            if 'prio' in exp: a("s_setprio 3")
            a(f"""
            s_add_u32 s20, s20, {SLOT}
            s_cmp_ge_u32 s20, {4*SLOT}
            s_cselect_b32 s20, 0, s20
            v_add_u32 {vr(aK1)}, s20, {vr(lK1)}
            v_add_u32 {vr(aK2)}, s20, {vr(lK2)}
            v_add_u32 {vr(aV)}, s20, {vr(lV)}
            """)
            off = 0
        else:
            off = (tt + 1) * T
        a(f"""
        ds_read_b128 {vr(KA,4)}, {vr(aK1)} offset:{off}
        ds_read_b32 {vr(KB)}, {vr(aK2)} offset:{off}
        ds_read_b128 {vr(VA[nxt],4)}, {vr(aV)} offset:{off}
        ds_read_b128 {vr(VB[nxt],4)}, {vr(aV)} offset:{off+VJ}
        """)
        E(SA, 2)
        a(f"{MF} {vr(OA,16)}, {vr(VA[cur],4)}, {vr(P,4)}, {vr(OA,16)}");            E(SA, 3)
        a("s_waitcnt lgkmcnt(0)")
        a(f"{MF} {vr(SA,16)}, {vr(KA,4)}, {vr(Q1[0],4)}, 0");                       E(SB, 0)
        a(f"{MF} {vr(SA,16)}, {vr(KB,4)}, {vr(Q2[0],4)}, {vr(SA,16)}")
        if hb and tt == 2:
            L6 = a.label("w6")
            a(f"""
            s_cmp_lt_u32 s16, 5
            s_cbranch_scc1 {L6}
            s_waitcnt vmcnt(0)
            {L6}:
            s_waitcnt vmcnt(6)
            s_mov_b64 exec, 1
            ds_add_u32 {vr(vCA)}, {vr(vOne)}
            s_mov_b64 exec, -1
            """)
        E(SB, 1)
        a(f"{MF} {vr(OA,16)}, {vr(VB[cur],4)}, {vr(P+4,4)}, {vr(OA,16)}");          E(SB, 2)
        a(f"{MF} {vr(OB,16)}, {vr(VA[cur],4)}, {vr(P,4)}, {vr(OB,16)}");            E(SB, 3)
    a(f"""
    s_add_u32 s16, s16, 1
    s_cmp_lt_u32 s16, 8
    s_cbranch_scc1 {L_stage}
    s_nop 1
    {MF} {vr(OB,16)}, {vr(VB[1],4)}, {vr(P+4,4)}, {vr(OB,16)}
    s_setprio 0
    s_nop 15
    s_nop 3
    """)
    if stamp:
        a(f"""
        s_memtime s[50:51]
        s_memrealtime s[52:53]
        s_waitcnt lgkmcnt(0)
        s_sub_u32 s48, s48, s44
        s_sub_u32 s50, s50, s44
        s_sub_u32 s52, s52, s46
        s_lshl_b32 s54, s2, 3
        s_add_u32 s54, s54, s14
        s_lshl_b32 s54, s54, 4
        v_mov_b32 {vr(SA)}, s48
        v_mov_b32 {vr(SA+1)}, s50
        v_mov_b32 {vr(SA+2)}, s52
        v_mov_b32 {vr(SA+3)}, s46
        v_mov_b32 {vr(SA+4)}, s54
        s_mov_b64 exec, 1
        global_store_dwordx4 {vr(SA+4)}, {vr(SA,4)}, s[42:43]
        s_mov_b64 exec, -1
        """)
    XB = 11 * 256
    L_hi = a.label("attn_hi"); L_x = a.label("attn_x")
    a(f"""
    s_barrier
    s_mul_i32 s40, s19, {2*XB}
    v_lshlrev_b32 {vr(vT)}, 2, {vr(vL)}
    v_add_u32 {vr(vT)}, s40, {vr(vT)}
    s_cmp_eq_u32 s23, 1
    s_cbranch_scc1 {L_hi}
    """)
    for i in range(11): a(f"ds_write_b32 {vr(vT)}, {vr(OB+i)} offset:{XB + i*256}")
    a(f"s_waitcnt lgkmcnt(0)\ns_barrier")
    for i in range(11): a(f"ds_read_b32 {vr(SA+i)}, {vr(vT)} offset:{i*256}")
    a("s_waitcnt lgkmcnt(0)")
    for i in range(11): a(f"v_add_f32 {vr(OA+i)}, {vr(OA+i)}, {vr(SA+i)}")
    a(f"s_branch {L_x}\n{L_hi}:")
    for i in range(11): a(f"ds_write_b32 {vr(vT)}, {vr(OA+i)} offset:{i*256}")
    a(f"s_waitcnt lgkmcnt(0)\ns_barrier")
    for i in range(11): a(f"ds_read_b32 {vr(SA+i)}, {vr(vT)} offset:{XB + i*256}")
    a("s_waitcnt lgkmcnt(0)")
    for i in range(11): a(f"v_add_f32 {vr(OA+i)}, {vr(OB+i)}, {vr(SA+i)}")
    for i in range(4): a(f"v_mov_b32 {vr(Q1[0]+i)}, {vr(Q1[1]+i)}")
    a(f"v_mov_b32 {vr(Q2[0])}, {vr(Q2[1])}")
    a(f"s_add_u32 s21, s21, 1\n{L_x}:")
    a(f"""
    v_mov_b32 {vr(vT)}, {vr(OA+10)}
    v_mov_b32 {vr(vT2)}, {vr(OA+10)}
    s_nop 1
    v_permlane32_swap_b32 {vr(vT)}, {vr(vT2)}
    s_nop 1
    v_mov_b32 {vr(vT2)}, 0x21800000              ; 2^-60
    v_cmp_nge_f32 vcc, {vr(vT)}, {vr(vT2)}
    s_nop 1
    s_cbranch_vccnz {L_fall}
    {L_store}:
    v_rcp_f32 {vr(vT)}, {vr(vT)}
    s_nop 0
    """)
    for i in range(10): a(f"v_mul_f32 {vr(OA+i)}, {vr(OA+i)}, {vr(vT)}")
    a(f"""
    v_cvt_pk_bf16_f32 {vr(P)}, {vr(OA)}, {vr(OA+1)}
    v_cvt_pk_bf16_f32 {vr(P+1)}, {vr(OA+2)}, {vr(OA+3)}
    v_cvt_pk_bf16_f32 {vr(P+2)}, {vr(OA+4)}, {vr(OA+5)}
    v_cvt_pk_bf16_f32 {vr(P+3)}, {vr(OA+6)}, {vr(OA+7)}
    v_cvt_pk_bf16_f32 {vr(P+4)}, {vr(OA+8)}, {vr(OA+9)}
    v_and_b32 {vr(vT)}, 31, {vr(vL)}
    v_mul_u32_u24 {vr(vT)}, 1152, {vr(vT)}
    v_lshrrev_b32 {vr(vT2)}, 5, {vr(vL)}
    v_lshlrev_b32 {vr(vT2)}, 4, {vr(vT2)}
    v_add_u32 {vr(vT2)}, {vr(vT)}, {vr(vT2)}
    s_mul_i32 s40, s21, {32*1152}
    s_add_u32 s40, s40, {WS_O}
    s_lshl_b32 s41, s12, 5
    s_add_u32 s41, s41, s40
    buffer_store_dwordx4 {vr(P,4)}, {vr(vT2)}, s[8:11], s41 offen
    s_lshl_b32 s41, s12, 2
    s_add_u32 s41, s41, s40
    s_mov_b32 exec_hi, 0
    buffer_store_dword {vr(P+4)}, {vr(vT)}, s[8:11], s41 offen offset:1024
    s_endpgm
    """)
    L_p1 = a.label("fb_p1"); L_p2 = a.label("fb_p2")
    MX = aK1
    a(f"""
    {L_fall}:
    v_mov_b32 {vr(Q2[0]+1)}, 0
    v_mov_b32 {vr(MX)}, 0xff800000
    v_and_b32 {vr(vT)}, 31, {vr(vL)}
    v_lshlrev_b32 {vr(lK2)}, 2, {vr(vT)}
    s_mul_i32 s41, s23, {4*T}
    v_subrev_u32 {vr(lV)}, s41, {vr(lV)}
    s_mov_b32 s40, s15
    s_mov_b32 s16, 0
    {L_p1}:
    buffer_load_dwordx4 {vr(KA,4)}, {vr(vL16)}, s[8:11], s40 offen
    buffer_load_dword {vr(KB)}, {vr(lK2)}, s[8:11], s40 offen offset:1024
    s_waitcnt vmcnt(0)
    {MF} {vr(SA,16)}, {vr(KA,4)}, {vr(Q1[0],4)}, 0
    {MF} {vr(SA,16)}, {vr(KB,4)}, {vr(Q2[0],4)}, {vr(SA,16)}
    s_nop 15
    s_nop 3
    """)
    for i in range(0, 16, 2): a(f"v_max3_f32 {vr(MX)}, {vr(MX)}, {vr(SA+i)}, {vr(SA+i+1)}")
    a(f"""
    s_add_u32 s40, s40, {T}
    s_add_u32 s16, s16, 1
    s_cmp_lt_u32 s16, 64
    s_cbranch_scc1 {L_p1}
    v_mov_b32 {vr(vT)}, {vr(MX)}
    s_nop 1
    v_permlane32_swap_b32 {vr(MX)}, {vr(vT)}
    s_nop 1
    v_max_f32 {vr(MX)}, {vr(MX)}, {vr(vT)}
    """)
    for i in range(16): a(f"v_mov_b32 {vr(OA+i)}, 0")
    a(f"""
    s_mov_b32 s40, s15
    s_mov_b32 s16, 0
    {L_p2}:
    buffer_load_dwordx4 {vr(KA,4)}, {vr(vL16)}, s[8:11], s40 offen
    buffer_load_dword {vr(KB)}, {vr(lK2)}, s[8:11], s40 offen offset:1024
    buffer_load_dwordx4 {vr(VA[0],4)}, {vr(lV)}, s[8:11], s40 offen
    buffer_load_dwordx4 {vr(VB[0],4)}, {vr(lV)}, s[8:11], s40 offen offset:{VJ}
    s_waitcnt vmcnt(0)
    {MF} {vr(SA,16)}, {vr(KA,4)}, {vr(Q1[0],4)}, 0
    {MF} {vr(SA,16)}, {vr(KB,4)}, {vr(Q2[0],4)}, {vr(SA,16)}
    s_nop 15
    s_nop 3
    """)
    for i in range(16): a(f"v_sub_f32 {vr(SA+i)}, {vr(SA+i)}, {vr(MX)}")
    for i in range(16): a(f"v_exp_f32 {vr(SA+i)}, {vr(SA+i)}")
    a("s_nop 0")
    for i in range(8): a(f"v_cvt_pk_bf16_f32 {vr(P+i)}, {vr(SA+2*i)}, {vr(SA+2*i+1)}")
    a(f"""
    s_nop 1
    {MF} {vr(OA,16)}, {vr(VA[0],4)}, {vr(P,4)}, {vr(OA,16)}
    {MF} {vr(OA,16)}, {vr(VB[0],4)}, {vr(P+4,4)}, {vr(OA,16)}
    s_add_u32 s40, s40, {T}
    s_add_u32 s16, s16, 1
    s_cmp_lt_u32 s16, 64
    s_cbranch_scc1 {L_p2}
    s_nop 15
    s_nop 3
    v_mov_b32 {vr(vT)}, {vr(OA+10)}
    v_mov_b32 {vr(vT2)}, {vr(OA+10)}
    s_nop 1
    v_permlane32_swap_b32 {vr(vT)}, {vr(vT2)}
    s_nop 1
    s_branch {L_store}
    """)
    return nv
```

```python
from asmlib import *
from layout import *
import math

XS = 16384
WSZ = 18432
STG = XS + WSZ
K1_LDS = 4 * STG
QSCALE = (18 ** -0.5) * math.log2(math.e)
import struct
def f2u(x): return struct.unpack("<I", struct.pack("<f", x))[0]

def gen_qkv(a, stamp=False):
    R = Regs(start=1, limit=256)
    vL = R.alloc("lane"); vT = R.alloc("t0"); vT2 = R.alloc("t1"); vT3 = R.alloc("t2"); vT4 = R.alloc("t3")
    vXo = R.alloc("xoff")
    vWo = [R.alloc(f"woff{u}") for u in range(3)]
    aX = [R.alloc("aX0"), R.alloc("aX1")]
    lX = [R.alloc("lX0"), R.alloc("lX1")]
    aW = R.alloc("aW"); lW = R.alloc("lW")
    XF = [[R.alloc(f"XF{ks}{rt}", 4) for rt in range(2)] for ks in range(2)]
    WF = [[R.alloc(f"WF{ks}{ct}", 4) for ct in range(5)] for ks in range(2)]
    ACC = [[R.alloc(f"ACC{rt}{ct}", 4) for ct in range(5)] for rt in range(2)]
    EA = [[[R.alloc(f"EA{ct}{u}{rt}") for rt in range(2)] for u in range(2)] for ct in range(5)]
    CO = [R.alloc(f"CO{u}") for u in range(5)]
    CP = R.alloc("CP", 20)
    nv = R.next
    MF = "v_mfma_f32_16x16x32_bf16"
    if stamp: stamp_begin(a)
    a(f"""
    s_load_dwordx2 s[4:5], s[0:1], 72
    s_load_dwordx2 s[6:7], s[0:1], 80
    s_load_dwordx2 s[34:35], s[0:1], 112
    v_and_b32 {vr(vL)}, 63, v0
    v_lshrrev_b32 {vr(vT)}, 6, v0
    s_nop 0
    v_readfirstlane_b32 s20, {vr(vT)}
    s_and_b32 s36, s2, 7              ; xcd
    s_lshr_b32 s37, s2, 3             ; li 0..23
    s_lshr_b32 s21, s36, 1
    s_lshl_b32 s21, s21, 2
    s_and_b32 s38, s37, 3
    s_add_u32 s21, s21, s38
    s_and_b32 s22, s36, 1
    s_mul_i32 s22, s22, 6
    s_lshr_b32 s38, s37, 2
    s_add_u32 s22, s22, s38
    s_lshr_b32 s23, s22, 2            ; type
    s_and_b32 s30, s20, 3             ; rg4
    s_lshr_b32 s31, s20, 2            ; cgw
    v_lshrrev_b32 {vr(vT)}, 4, {vr(vL)}
    s_and_b32 s38, s20, 1
    s_lshl_b32 s38, s38, 2
    v_add_u32 {vr(vT)}, s38, {vr(vT)}           ; f (0..7)
    v_and_b32 {vr(vT2)}, 7, {vr(vL)}
    v_xor_b32 {vr(vT)}, {vr(vT)}, {vr(vT2)}      ; c
    v_lshlrev_b32 {vr(vT)}, 4, {vr(vT)}
    v_lshrrev_b32 {vr(vT2)}, 3, {vr(vL)}
    v_mul_u32_u24 {vr(vT2)}, 1152, {vr(vT2)}
    v_add_u32 {vr(vXo)}, {vr(vT)}, {vr(vT2)}
    s_lshl_b32 s24, s21, 7
    s_lshl_b32 s38, s20, 3
    s_add_u32 s24, s24, s38
    s_mul_i32 s24, s24, 1152
    s_add_u32 s25, s24, {64*1152}
    s_mul_i32 s26, s38, 3456
    s_mul_i32 s39, s22, 288
    s_add_u32 s26, s26, s39
    """)
    a("s_and_b32 s38, s20, 1\ns_lshl_b32 s38, s38, 3      ; 8*(w&1)")
    for u in range(3):
        a(f"""
        v_add_u32 {vr(vT)}, {64*u}, {vr(vL)}
        v_mul_u32_u24 {vr(vT2)}, 3641, {vr(vT)}
        v_lshrrev_b32 {vr(vT2)}, 16, {vr(vT2)}
        v_mul_u32_u24 {vr(vT3)}, 18, {vr(vT2)}
        v_sub_u32 {vr(vT3)}, {vr(vT)}, {vr(vT3)}       ; pos
        v_subrev_u32 {vr(vT3)}, s38, {vr(vT3)}
        v_add_u32 {vr(vT4)}, 18, {vr(vT3)}
        v_min_u32 {vr(vT3)}, {vr(vT3)}, {vr(vT4)}
        v_lshlrev_b32 {vr(vT3)}, 4, {vr(vT3)}
        v_mul_u32_u24 {vr(vT2)}, 3456, {vr(vT2)}
        v_add_u32 {vr(vWo[u])}, {vr(vT2)}, {vr(vT3)}
        """)
    a(f"""
    s_waitcnt lgkmcnt(0)
    s_mov_b32 s8, s4
    s_and_b32 s9, s5, 0xffff
    s_mov_b32 s10, {2048*1152}
    s_mov_b32 s11, 0x20000
    s_mov_b32 s12, s6
    s_and_b32 s13, s7, 0xffff
    s_mov_b32 s14, {576*3456}
    s_mov_b32 s15, 0x20000
    s_mov_b32 s16, s34
    s_and_b32 s17, s35, 0xffff
    s_mov_b32 s18, {WS_END}
    s_mov_b32 s19, 0x20000
    s_lshl_b32 s40, s20, 10
    s_mul_i32 s41, s20, 2304          ; w*2304
    s_add_u32 s41, s41, {XS}
    s_mov_b32 s28, 0
    """)
    def dma_stage():
        a(f"""
        s_add_u32 m0, s28, s40
        s_nop 0
        buffer_load_dwordx4 {vr(vXo)}, s[8:11], s24 offen lds
        s_add_u32 m0, m0, 8192
        s_nop 0
        buffer_load_dwordx4 {vr(vXo)}, s[8:11], s25 offen lds
        s_add_u32 m0, s28, s41
        s_nop 0
        buffer_load_dwordx4 {vr(vWo[0])}, s[12:15], s26 offen lds
        s_add_u32 m0, m0, 1024
        s_nop 0
        buffer_load_dwordx4 {vr(vWo[1])}, s[12:15], s26 offen lds
        s_add_u32 m0, m0, 1024
        s_mov_b64 exec, 0xffff
        buffer_load_dwordx4 {vr(vWo[2])}, s[12:15], s26 offen lds
        s_mov_b64 exec, -1
        s_add_u32 s24, s24, 128
        s_add_u32 s25, s25, 128
        s_add_u32 s26, s26, {64*3456}
        s_add_u32 s28, s28, {STG}
        s_cmp_ge_u32 s28, {4*STG}
        s_cselect_b32 s28, 0, s28
        """)
    for st in range(4): dma_stage()
    a(f"""
    v_and_b32 {vr(vT)}, 15, {vr(vL)}              ; r16
    v_lshrrev_b32 {vr(vT2)}, 4, {vr(vL)}          ; g
    v_lshrrev_b32 {vr(vT3)}, 1, {vr(vT)}          ; f
    v_xor_b32 {vr(vT3)}, {vr(vT3)}, {vr(vT2)}      ; phys(ks=0)
    s_lshl_b32 s38, s30, 5                        ; 32*rg4
    v_add_u32 {vr(vT4)}, s38, {vr(vT)}
    v_lshlrev_b32 {vr(vT4)}, 7, {vr(vT4)}
    v_lshlrev_b32 {vr(lX[0])}, 4, {vr(vT3)}
    v_add_u32 {vr(lX[0])}, {vr(lX[0])}, {vr(vT4)}
    v_xor_b32 {vr(lX[1])}, 64, {vr(lX[0])}
    v_lshrrev_b32 {vr(vT3)}, 2, {vr(vT)}          ; r
    v_lshlrev_b32 {vr(vT4)}, 3, {vr(vT2)}
    v_add_u32 {vr(vT3)}, {vr(vT3)}, {vr(vT4)}
    v_mul_u32_u24 {vr(vT3)}, 288, {vr(vT3)}
    v_and_b32 {vr(vT4)}, 3, {vr(vL)}              ; c
    v_lshlrev_b32 {vr(vT4)}, 3, {vr(vT4)}         ; c*8 == (c&1)*8 + (c>>1)*16
    v_add_u32 {vr(vT3)}, {vr(vT3)}, {vr(vT4)}
    s_cmp_eq_u32 s31, 0
    s_mov_b32 s38, -160
    s_cselect_b32 s38, 128, s38
    v_and_b32 {vr(vT4)}, 1, {vr(vT2)}
    v_mul_lo_u32 {vr(vT4)}, {vr(vT4)}, s38
    v_add_u32 {vr(vT3)}, {vr(vT3)}, {vr(vT4)}
    s_mul_i32 s38, s31, 160
    s_add_u32 s38, s38, {XS}
    v_add_u32 {vr(lW)}, s38, {vr(vT3)}
    v_mov_b32 {vr(aX[0])}, {vr(lX[0])}
    v_mov_b32 {vr(aX[1])}, {vr(lX[1])}
    v_mov_b32 {vr(aW)}, {vr(lW)}
    """)
    for rt in range(2):
        for ct in range(5):
            for i in range(4): a(f"v_mov_b32 {vr(ACC[rt][ct]+i)}, 0")
    L_ev = a.label("k1_ev"); L_ed = a.label("k1_ed")
    a(f"s_cmp_eq_u32 s23, 2\ns_cbranch_scc1 {L_ev}")
    a(f"""
    v_and_b32 {vr(vT)}, 15, {vr(vL)}
    v_lshrrev_b32 {vr(vT2)}, 4, {vr(vL)}
    v_lshlrev_b32 {vr(vT2)}, 2, {vr(vT2)}          ; 4g
    s_mul_i32 s38, s31, 80
    v_add_u32 {vr(vT2)}, s38, {vr(vT2)}            ; 80cgw + 4g
    s_mul_i32 s39, s30, 1152
    """)
    for ct in range(5):
        for u in range(2):
            a(f"""
            v_add_u32 {vr(vT3)}, {16*ct+2*u}, {vr(vT2)}      ; col
            v_mul_u32_u24 {vr(vT4)}, 3641, {vr(vT3)}
            v_lshrrev_b32 {vr(vT4)}, 16, {vr(vT4)}           ; sl
            v_mul_u32_u24 {vr(CP)}, 18, {vr(vT4)}
            v_sub_u32 {vr(vT3)}, {vr(vT3)}, {vr(CP)}          ; d
            v_mul_u32_u24 {vr(vT4)}, 4608, {vr(vT4)}
            v_add_u32 {vr(vT4)}, s39, {vr(vT4)}
            v_lshrrev_b32 {vr(CP)}, 3, {vr(vT3)}
            v_lshlrev_b32 {vr(CP)}, 9, {vr(CP)}               ; *512
            v_add_u32 {vr(vT4)}, {vr(vT4)}, {vr(CP)}
            v_and_b32 {vr(CP)}, 7, {vr(vT3)}
            v_lshlrev_b32 {vr(CP)}, 1, {vr(CP)}
            v_add_u32 {vr(vT4)}, {vr(vT4)}, {vr(CP)}
            v_cmp_lt_u32 vcc, 15, {vr(vT3)}                   ; tail?
            v_lshlrev_b32 {vr(CP)}, 4, {vr(vT)}               ; r16*16
            v_lshlrev_b32 {vr(CP+1)}, 2, {vr(vT)}             ; r16*4
            v_cndmask_b32 {vr(CP)}, {vr(CP)}, {vr(CP+1)}, vcc
            v_add_u32 {vr(EA[ct][u][0])}, {vr(vT4)}, {vr(CP)}
            v_mov_b32 {vr(CP)}, 256
            v_mov_b32 {vr(CP+1)}, 64
            v_cndmask_b32 {vr(CP)}, {vr(CP)}, {vr(CP+1)}, vcc
            v_add_u32 {vr(EA[ct][u][1])}, {vr(EA[ct][u][0])}, {vr(CP)}
            """)
    a(f"""
    s_cmp_eq_u32 s23, 0
    s_mov_b32 s38, {TILE_KV}
    s_cselect_b32 s38, {TILE_Q}, s38
    """)
    for u in range(5):
        a(f"""
        v_add_u32 {vr(vT)}, {64*u}, {vr(vL)}
        v_mul_u32_u24 {vr(vT2)}, 911, {vr(vT)}
        v_lshrrev_b32 {vr(vT2)}, 16, {vr(vT2)}        ; idx/72
        v_mul_u32_u24 {vr(vT3)}, 72, {vr(vT2)}
        v_sub_u32 {vr(vT3)}, {vr(vT)}, {vr(vT3)}
        v_lshlrev_b32 {vr(vT3)}, 4, {vr(vT3)}
        v_mul_lo_u32 {vr(vT2)}, {vr(vT2)}, s38
        v_add_u32 {vr(CO[u])}, {vr(vT2)}, {vr(vT3)}
        """)
    a(f"s_branch {L_ed}\n{L_ev}:")
    a(f"""
    v_and_b32 {vr(vT)}, 15, {vr(vL)}
    v_lshrrev_b32 {vr(vT2)}, 4, {vr(vL)}           ; g
    v_and_b32 {vr(vT3)}, 1, {vr(vT2)}
    v_mul_u32_u24 {vr(vT3)}, {VHH}, {vr(vT3)}
    v_lshrrev_b32 {vr(vT2)}, 1, {vr(vT2)}
    v_lshlrev_b32 {vr(vT2)}, 3, {vr(vT2)}
    v_add_u32 {vr(vT2)}, {vr(vT2)}, {vr(vT3)}
    s_mul_i32 s39, s30, {2*VJ}
    v_add_u32 {vr(vT2)}, s39, {vr(vT2)}
    s_mul_i32 s38, s31, 80
    v_add_u32 {vr(vT)}, s38, {vr(vT)}              ; 80cgw + r16
    """)
    for ct in range(5):
        a(f"""
        v_add_u32 {vr(vT3)}, {16*ct}, {vr(vT)}
        v_mul_u32_u24 {vr(vT4)}, 3641, {vr(vT3)}
        v_lshrrev_b32 {vr(vT4)}, 16, {vr(vT4)}           ; sl
        v_mul_u32_u24 {vr(CP)}, 18, {vr(vT4)}
        v_sub_u32 {vr(vT3)}, {vr(vT3)}, {vr(CP)}          ; d
        v_mul_u32_u24 {vr(vT4)}, {4*2*VJ}, {vr(vT4)}
        v_lshlrev_b32 {vr(vT3)}, 4, {vr(vT3)}
        v_add3_u32 {vr(EA[ct][0][0])}, {vr(vT4)}, {vr(vT3)}, {vr(vT2)}
        """)
    for u in range(5):
        a(f"""
        v_add_u32 {vr(vT)}, {64*u}, {vr(vL)}
        v_mul_u32_u24 {vr(vT2)}, 820, {vr(vT)}
        v_lshrrev_b32 {vr(vT2)}, 16, {vr(vT2)}        ; idx/80
        v_mul_u32_u24 {vr(vT3)}, 80, {vr(vT2)}
        v_sub_u32 {vr(vT3)}, {vr(vT)}, {vr(vT3)}
        v_lshlrev_b32 {vr(vT3)}, 4, {vr(vT3)}
        v_mul_u32_u24 {vr(vT2)}, {TILE_KV}, {vr(vT2)}
        v_add3_u32 {vr(CO[u])}, {vr(vT2)}, {vr(vT3)}, {vr(vT3)}
        v_sub_u32 {vr(CO[u])}, {vr(CO[u])}, {vr(vT3)}
        v_add_u32 {vr(CO[u])}, 1152, {vr(CO[u])}
        """)
    a(f"{L_ed}:")
    L_end = a.label("k1_loop_end")
    labels = {(tv, nc): a.label(f"k1_loop_{tv}_{nc}") for tv in range(2) for nc in (5, 4)}
    def reads(ks, nc):
        s = ""
        for rt in range(2): s += f"ds_read_b128 {vr(XF[ks][rt],4)}, {vr(aX[ks])} offset:{rt*2048}\n"
        for ct in range(nc):
            for hf in range(2):
                s += f"ds_read_b64_tr_b16 {vr(WF[ks][ct]+2*hf,2)}, {vr(aW)} offset:{ks*9216 + hf*1152 + ct*32}\n"
        return s
    def mfmas(ks, nc, tv):
        s = ""
        for ct in range(nc):
            for rt in range(2):
                if tv: s += f"{MF} {vr(ACC[rt][ct],4)}, {vr(XF[ks][rt],4)}, {vr(WF[ks][ct],4)}, {vr(ACC[rt][ct],4)}\n"
                else:  s += f"{MF} {vr(ACC[rt][ct],4)}, {vr(WF[ks][ct],4)}, {vr(XF[ks][rt],4)}, {vr(ACC[rt][ct],4)}\n"
        return s
    if stamp: stamp_mark(a, 0)
    a(f"""
    s_waitcnt vmcnt(15)
    s_barrier""")
    if stamp: stamp_mark(a, 1)
    a(f"""
    s_mov_b32 s27, 0
    s_mov_b32 s29, 0
    s_cmp_eq_u32 s23, 2
    s_cbranch_scc1 {labels[(1,5)]}_sel
    s_cmp_eq_u32 s31, 0
    s_cbranch_scc1 {labels[(0,5)]}_pre
    s_branch {labels[(0,4)]}_pre
    {labels[(1,5)]}_sel:
    s_cmp_eq_u32 s31, 0
    s_cbranch_scc1 {labels[(1,5)]}_pre
    s_branch {labels[(1,4)]}_pre
    """)
    for tv in range(2):
        for nc in (5, 4):
            L = labels[(tv, nc)]
            Lw5 = a.label("w5"); Lw = a.label("w"); Lnd = a.label("nd"); Llast = a.label("last")
            nr = 2 + 2*nc
            a(f"{L}_pre:")
            a(reads(0, nc))
            a(f"{L}:")
            a(reads(1, nc))
            a(f"s_waitcnt lgkmcnt({nr})")
            a(mfmas(0, nc, tv))
            a(f"""
            s_cmp_eq_u32 s27, 8
            s_cbranch_scc1 {Llast}
            s_cmp_lt_u32 s27, 6
            s_cbranch_scc1 {Lw}
            s_cmp_eq_u32 s27, 6
            s_cbranch_scc1 {Lw5}
            s_waitcnt vmcnt(0)
            {Lw5}:
            s_waitcnt vmcnt(5)
            {Lw}:
            s_waitcnt vmcnt(10) lgkmcnt(0)
            s_barrier
            s_cmp_ge_u32 s27, 5
            s_cbranch_scc1 {Lnd}
            """)
            dma_stage()
            a(f"""
            {Lnd}:
            s_add_u32 s29, s29, {STG}
            s_cmp_ge_u32 s29, {4*STG}
            s_cselect_b32 s29, 0, s29
            v_add_u32 {vr(aX[0])}, s29, {vr(lX[0])}
            v_add_u32 {vr(aW)}, s29, {vr(lW)}
            """)
            a(reads(0, nc))
            a(f"v_add_u32 {vr(aX[1])}, s29, {vr(lX[1])}")
            a(mfmas(1, nc, tv))
            a(f"""
            s_add_u32 s27, s27, 1
            s_branch {L}
            {Llast}:
            s_waitcnt lgkmcnt(0)
            """)
            a(mfmas(1, nc, tv))
            a(f"s_branch {L_end}")
    a(f"{L_end}:")
    if stamp: stamp_mark(a, 2)
    L_v = a.label("k1_epi_v"); L_co = a.label("k1_co"); L_nk = a.label("k1_nok")
    a(f"""
    s_nop 7
    s_barrier
    s_cmp_eq_u32 s23, 2
    s_cbranch_scc1 {L_v}
    s_cmp_eq_u32 s23, 0
    s_cselect_b32 s38, {hex(f2u(QSCALE))}, 1.0
    """)
    for ct in range(5):
        Ls = None
        if ct == 4:
            Ls = a.label("skip5")
            a(f"s_cmp_eq_u32 s31, 1\ns_cbranch_scc1 {Ls}")
        for rt in range(2):
            b = ACC[rt][ct]
            a(f"""
            v_mul_f32 {vr(b)}, s38, {vr(b)}
            v_mul_f32 {vr(b+1)}, s38, {vr(b+1)}
            v_mul_f32 {vr(b+2)}, s38, {vr(b+2)}
            v_mul_f32 {vr(b+3)}, s38, {vr(b+3)}
            v_cvt_pk_bf16_f32 {vr(b)}, {vr(b)}, {vr(b+1)}
            v_cvt_pk_bf16_f32 {vr(b+2)}, {vr(b+2)}, {vr(b+3)}
            ds_write_b32 {vr(EA[ct][0][rt])}, {vr(b)}
            ds_write_b32 {vr(EA[ct][1][rt])}, {vr(b+2)}
            """)
        if Ls: a(f"{Ls}:")
    a(f"s_branch {L_co}\n{L_v}:")
    for ct in range(5):
        Ls = None
        if ct == 4:
            Ls = a.label("skip5v")
            a(f"s_cmp_eq_u32 s31, 1\ns_cbranch_scc1 {Ls}")
        for rt in range(2):
            b = ACC[rt][ct]
            a(f"""
            v_cvt_pk_bf16_f32 {vr(b)}, {vr(b)}, {vr(b+1)}
            v_cvt_pk_bf16_f32 {vr(b+1)}, {vr(b+2)}, {vr(b+3)}
            ds_write_b64 {vr(EA[ct][0][0])}, {vr(b,2)} offset:{rt*VJ}
            """)
        if Ls: a(f"{Ls}:")
    a(f"""
    v_lshrrev_b32 {vr(vT)}, 1, {vr(vL)}
    v_mul_u32_u24 {vr(vT)}, {VHH}, {vr(vT)}
    v_and_b32 {vr(vT2)}, 1, {vr(vL)}
    v_lshlrev_b32 {vr(vT3)}, 4, {vr(vT2)}
    v_add_u32 {vr(vT)}, {vr(vT)}, {vr(vT3)}
    s_mul_i32 s38, s20, {8*VJ}
    s_add_u32 s38, s38, {18*16}
    v_add_u32 {vr(vT)}, s38, {vr(vT)}
    v_mov_b32 {vr(vT3)}, 0x3f803f80
    v_cmp_eq_u32 vcc, 0, {vr(vT2)}
    v_mov_b32 {vr(vT2)}, 0
    s_nop 0
    v_cndmask_b32 {vr(CP)}, {vr(vT2)}, {vr(vT3)}, vcc
    v_mov_b32 {vr(CP+1)}, {vr(CP)}
    v_mov_b32 {vr(CP+2)}, {vr(CP)}
    v_mov_b32 {vr(CP+3)}, {vr(CP)}
    s_mov_b32 exec_hi, 0
    ds_write_b128 {vr(vT)}, {vr(CP,4)}
    s_mov_b64 exec, -1
    {L_co}:
    s_waitcnt lgkmcnt(0)
    s_barrier
    s_and_b32 s38, s22, 3
    s_lshl_b32 s38, s38, 3
    s_add_u32 s38, s38, s20           ; head
    s_lshl_b32 s39, s38, 6
    s_lshl_b32 s42, s21, 2
    s_add_u32 s39, s39, s42
    s_cmp_eq_u32 s23, 0
    s_mov_b32 s42, {TILE_KV}
    s_cselect_b32 s42, {TILE_Q}, s42
    s_cselect_b32 s43, {WS_Q}, {WS_KV}
    s_mul_i32 s39, s39, s42
    s_add_u32 s39, s39, s43
    s_cmp_eq_u32 s23, 2
    s_mov_b32 s42, 4608
    s_cselect_b32 s42, {8*VJ}, s42
    s_mul_i32 s42, s42, s20
    v_lshlrev_b32 {vr(vT)}, 4, {vr(vL)}
    v_add_u32 {vr(vT)}, s42, {vr(vT)}
    """)
    for u in range(5): a(f"ds_read_b128 {vr(CP+4*u,4)}, {vr(vT)} offset:{u*1024}")
    for u in range(4):
        a(f"s_waitcnt lgkmcnt({4-u})\nbuffer_store_dwordx4 {vr(CP+4*u,4)}, {vr(CO[u])}, s[16:19], s39 offen")
    Lf = a.label("full5")
    a(f"""
    s_waitcnt lgkmcnt(0)
    s_cmp_eq_u32 s23, 2
    s_cbranch_scc1 {Lf}
    s_mov_b32 exec_hi, 0
    {Lf}:
    buffer_store_dwordx4 {vr(CP+16,4)}, {vr(CO[4])}, s[16:19], s39 offen
    s_mov_b64 exec, -1
    s_cmp_eq_u32 s23, 1
    s_cbranch_scc0 {L_nk}
    """)
    for rd in range(2):
        a(f"""
        v_lshrrev_b32 {vr(vT)}, 5, {vr(vL)}
        v_add_u32 {vr(vT)}, {2*rd}, {vr(vT)}
        v_mul_u32_u24 {vr(vT)}, 1152, {vr(vT)}
        v_add_u32 {vr(vT)}, s42, {vr(vT)}
        v_and_b32 {vr(vT2)}, 31, {vr(vL)}
        v_lshlrev_b32 {vr(vT3)}, 4, {vr(vT2)}
        v_add_u32 {vr(vT3)}, {vr(vT)}, {vr(vT3)}
        v_lshlrev_b32 {vr(vT2)}, 2, {vr(vT2)}
        v_add_u32 {vr(vT2)}, {vr(vT)}, {vr(vT2)}
        ds_read_b128 {vr(XF[0][0],4)}, {vr(vT3)}
        ds_read_b128 {vr(XF[0][1],4)}, {vr(vT3)} offset:512
        ds_read_b32 {vr(XF[1][0])}, {vr(vT2)} offset:1024
        s_waitcnt lgkmcnt(0)
        v_mov_b32 {vr(XF[1][1]+rd)}, 0
        """)
        acc = XF[1][1]+rd
        for r in [XF[0][0]+i for i in range(4)] + [XF[0][1]+i for i in range(4)] + [XF[1][0]]:
            a(f"v_dot2_f32_bf16 {vr(acc)}, {vr(r)}, {vr(r)}, {vr(acc)}")
        a("s_nop 2")
    m = XF[1][1]
    a(f"v_max_f32 {vr(m)}, {vr(m)}, {vr(m+1)}")
    for ctrl in ("row_shr:1", "row_shr:2", "row_shr:4", "row_shr:8", "row_bcast:15 row_mask:0xa", "row_bcast:31 row_mask:0xc"):
        a(f"s_nop 1\nv_max_f32_dpp {vr(m)}, {vr(m)}, {vr(m)} {ctrl}")
    a(f"""
    s_nop 1
    v_readlane_b32 s43, {vr(m)}, 63
    s_lshl_b32 s38, s38, 6
    s_lshl_b32 s44, s21, 2
    s_add_u32 s38, s38, s44
    s_add_u32 s38, s38, {WS_KMAX}
    v_mov_b32 {vr(vT)}, s43
    v_mov_b32 {vr(vT2)}, 0
    s_mov_b64 exec, 1
    buffer_store_dword {vr(vT)}, {vr(vT2)}, s[16:19], s38 offen
    {L_nk}:
    s_mov_b64 exec, -1
    """)
    if stamp:
        a("s_waitcnt vmcnt(0)")
        stamp_end(a, 40)
    a("s_endpgm")
    return nv
```

```python
from asmlib import *
from layout import *
from nt import *

G2_NS = 6
G2_LDS = G2_NS * (8192 + 64*64)

def gen_g2(a, mode, wg="s2", stamp=False, wait_h=False):
    K = 1152 if mode == 'y' else 576
    NSTG = K // 32
    R = Regs(start=1, limit=128)
    nt = NT(a, R, 64, G2_NS, NSTG, "g2"+mode)
    if stamp: stamp_begin(a)
    a(f"""
    s_load_dwordx2 s[4:5], s[0:1], 0         ; A_x
    s_load_dwordx2 s[6:7], s[0:1], 64        ; Dskip
    s_load_dwordx2 s[8:9], s[0:1], 96        ; out
    s_load_dwordx4 s[60:63], s[0:1], 104
    s_and_b32 s26, {wg}, 15                   ; rt
    s_lshr_b32 s27, {wg}, 4                   ; cg
    """)
    vL, t = lane_consts(a, R)
    L_ld = a.label("g2_loader"); L_exit = a.label("g2_exit")
    def srd(d, lo, size):
        a(f"s_mov_b32 s{d}, s{lo}\ns_and_b32 s{d+1}, s{lo+1}, 0xffff\ns_mov_b32 s{d+2}, {size}\ns_mov_b32 s{d+3}, 0x20000")
    a("s_waitcnt lgkmcnt(0)")
    a(f"s_cmp_ge_u32 s20, 4\ns_cbranch_scc1 {L_ld}")
    ACC = [[R.alloc(f"ACC{j}", 16)] for j in range(2)]
    vO = R.alloc("vO"); vX = R.alloc("vX"); vD = R.alloc("vD")
    a(f"""
    s_lshr_b32 s28, s20, 1            ; th
    s_and_b32 s29, s20, 1             ; db
    """)
    srd(32, 8, OUT_BYTES)
    a(f"""
    s_lshl_b32 s30, s27, 6
    s_lshl_b32 s31, s29, 5
    s_add_u32 s30, s30, s31
    v_and_b32 {vr(t[0])}, 31, {vr(vL)}
    v_add_u32 {vr(t[0])}, s30, {vr(t[0])}          ; column
    v_lshrrev_b32 {vr(t[1])}, 5, {vr(vL)}
    v_lshlrev_b32 {vr(t[1])}, 2, {vr(t[1])}        ; 4hh
    s_lshl_b32 s31, s26, 7
    s_lshl_b32 s33, s28, 6
    """.replace("s_lshl_b32 s33, s28, 6", "s_lshl_b32 s44, s28, 6"))
    a(f"""
    s_add_u32 s31, s31, s44
    v_add_u32 {vr(t[1])}, s31, {vr(t[1])}          ; row (i=0,j=0)
    v_mul_u32_u24 {vr(vO)}, 4608, {vr(t[1])}
    v_lshlrev_b32 {vr(t[2])}, 2, {vr(t[0])}
    v_add_u32 {vr(vO)}, {vr(vO)}, {vr(t[2])}
    """)
    if mode == 'o':
        a(f"v_add_u32 {vr(vO)}, {576*4}, {vr(vO)}")
    XR = None
    if mode == 'y':
        XR = R.alloc("XR", 32)
        srd(36, 4, 2048*1152); srd(40, 6, 1152)
        a(f"""
        v_mul_u32_u24 {vr(vX)}, 1152, {vr(t[1])}
        v_lshlrev_b32 {vr(t[2])}, 1, {vr(t[0])}
        v_add_u32 {vr(vX)}, {vr(vX)}, {vr(t[2])}
        buffer_load_ushort {vr(vD)}, {vr(t[2])}, s[40:43], 0 offen
        """)
        for j in range(2):
            for i in range(16):
                row = 32*j + 8*(i//4) + i%4
                a(f"s_mov_b32 s45, {row*1152}\nbuffer_load_ushort {vr(XR+16*j+i)}, {vr(vX)}, s[36:39], s45 offen")
    for j in range(2):
        for i in range(16): a(f"v_mov_b32 {vr(ACC[j][0]+i)}, 0")
    a(f"s_lshl_b32 s28, s28, 12\ns_lshl_b32 s29, s29, 11")
    compute_loop(a, nt, R, vL, t, 28, [(29, 0)], [(0,0),(1,0)], ACC)
    if stamp: stamp_mark(a, 0)
    if mode == 'y':
        a(f"s_waitcnt vmcnt(0)\nv_lshlrev_b32 {vr(vD)}, 16, {vr(vD)}")
    for j in range(2):
        for i in range(16):
            row = 32*j + 8*(i//4) + i%4
            r = ACC[j][0]+i
            if mode == 'y':
                a(f"v_lshlrev_b32 {vr(XR+16*j+i)}, 16, {vr(XR+16*j+i)}\nv_fma_f32 {vr(r)}, {vr(XR+16*j+i)}, {vr(vD)}, {vr(r)}")
            a(f"s_mov_b32 s45, {row*4608}\nbuffer_store_dword {vr(r)}, {vr(vO)}, s[32:35], s45 offen")
    a(f"s_branch {L_exit}")
    nv = R.next
    a(f"{L_ld}:")
    vOA = R.alloc("vOA");
    rs = K * 2
    srd(28, 62, WS_END)
    baseA = WS_H if mode == 'y' else WS_O
    baseB = WS_CPP if mode == 'y' else WS_WOT
    if wait_h:
        Lp = a.label("g2_poll")
        a(f"""
        s_lshl_b32 s46, s26, 2
        s_add_u32 s46, s46, 128
        v_mov_b32 {vr(t[3])}, s46
        s_mov_b32 s48, 0
        {Lp}:
        global_load_dword {vr(t[2])}, {vr(t[3])}, s[60:61] sc1
        s_waitcnt vmcnt(0)
        v_readfirstlane_b32 s47, {vr(t[2])}
        s_cmp_ge_u32 s47, 36
        s_cbranch_scc1 {Lp}_ok
        s_sleep 4
        s_add_u32 s48, s48, 1
        s_cmp_lt_u32 s48, 200000
        s_cbranch_scc1 {Lp}
        {Lp}_ok:
        """)
    a(f"""
    s_sub_u32 s21, s20, 4              ; lw
    v_and_b32 {vr(t[0])}, 3, {vr(vL)}
    v_lshrrev_b32 {vr(t[1])}, 4, {vr(vL)}
    v_xor_b32 {vr(t[0])}, {vr(t[0])}, {vr(t[1])}
    v_lshlrev_b32 {vr(t[0])}, 4, {vr(t[0])}           ; c*16
    v_lshrrev_b32 {vr(t[1])}, 2, {vr(vL)}             ; ri
    v_mul_u32_u24 {vr(t[2])}, {rs}, {vr(t[1])}
    v_add_u32 {vr(vOA)}, {vr(t[2])}, {vr(t[0])}
    s_lshl_b32 s44, s26, 7
    s_lshl_b32 s45, s21, 4
    s_add_u32 s44, s44, s45
    s_mul_i32 s44, s44, {rs}
    s_add_u32 s44, s44, {baseA}
    s_add_u32 s45, s44, {64*rs}
    s_lshl_b32 s46, s27, 6
    s_lshl_b32 s47, s21, 4
    s_add_u32 s46, s46, s47
    s_mul_i32 s46, s46, {rs}
    s_add_u32 s46, s46, {baseB}
    """)
    loader(a, nt, vOA, vOA, [28, 28], [44, 45], [28], [46], L_exit)
    a(f"{L_exit}:")
    if stamp:
        a("s_waitcnt vmcnt(0)")
        stamp_end(a, 104)
    a("s_endpgm")
    return max(nv, R.next)
```

```python
S = 2048; D = 576; H = 32; DH = 18
TILE_Q = 1152
VROWS = 20
VHH = VROWS * 16
VJ = 2 * VHH
TILE_KV = 1152 + 2 * VJ
WS_Q = 0
WS_KV = WS_Q + H * 64 * TILE_Q
WS_KMAX = WS_KV + H * 64 * TILE_KV
WS_O = WS_KMAX + 4096
WS_WOT = WS_O + S * 1152
WS_CPP = WS_WOT + 576 * 1152
WS_H = WS_CPP + 576 * 2304
WS_E = WS_H + S * 2304
WS_END = WS_E + 32 * 576 * 8
WS_SIZE = 268435456
OUT_BYTES = S * 1152 * 4
ATTN_LDS = 4 * 8 * TILE_KV + 64
```

```python
from asmlib import *
from layout import *
import math, struct
def f2u(x): return struct.unpack("<I", struct.pack("<f", x))[0]
MF = "v_mfma_f32_32x32x16_bf16"

class NT:
    def __init__(self, a, R, NB, NS, NSTG, tag):
        self.a = a; self.R = R; self.NB = NB; self.NS = NS; self.NSTG = NSTG; self.tag = tag
        self.STG = 8192 + NB * 64
        self.LDS = NS * self.STG

def lane_consts(a, R):
    vL = R.alloc("lane"); t = [R.alloc(f"t{i}") for i in range(4)]
    a(f"""
    v_and_b32 {vr(vL)}, 63, v0
    v_lshrrev_b32 {vr(t[0])}, 6, v0
    s_nop 0
    v_readfirstlane_b32 s20, {vr(t[0])}
    """)
    return vL, t

def loader(a, nt, vOffA, vOffB, srdA_list, sA_list, srdB_list, sB_list, L_exit, sKstep=64):
    nA = len(sA_list); nB = len(sB_list); n = nA + nB
    NS, NSTG, STG = nt.NS, nt.NSTG, nt.STG
    def dma():
        for u in range(nA):
            a(f"""
            s_add_u32 m0, s22, {u*4096}
            s_nop 0
            buffer_load_dwordx4 {vr(vOffA)}, s[{srdA_list[u]}:{srdA_list[u]+3}], s{sA_list[u]} offen lds
            s_add_u32 s{sA_list[u]}, s{sA_list[u]}, {sKstep}
            """)
        for u in range(nB):
            a(f"""
            s_add_u32 m0, s22, {8192 + u*4096}
            s_nop 0
            buffer_load_dwordx4 {vr(vOffB)}, s[{srdB_list[u]}:{srdB_list[u]+3}], s{sB_list[u]} offen lds
            s_add_u32 s{sB_list[u]}, s{sB_list[u]}, {sKstep}
            """)
        a(f"""
        s_add_u32 s22, s22, {STG}
        s_sub_u32 s23, s22, {NS*STG}
        s_cmp_ge_u32 s22, {NS*STG}
        s_cselect_b32 s22, s23, s22
        """)
    Ll = a.label("ld_loop"); Lt = a.label("ld_tail"); Lw = a.label("ld_w"); Lp = a.label("ld_pro")
    a(f"""
    s_lshl_b32 s22, s21, 10
    s_mov_b32 s24, 0
    {Lp}:
    """)
    dma()
    a(f"""
    s_add_u32 s24, s24, 1
    s_cmp_lt_u32 s24, {NS}
    s_cbranch_scc1 {Lp}
    s_waitcnt vmcnt({(NS-1)*n})
    s_barrier
    s_mov_b32 s24, 0                 ; s
    {Ll}:
    s_cmp_gt_u32 s24, {NSTG-NS}
    s_cbranch_scc0 {Lw}
    s_waitcnt vmcnt(0)
    {Lw}:
    s_waitcnt vmcnt({(NS-2)*n})
    s_barrier
    s_cmp_ge_u32 s24, {NSTG-NS}
    s_cbranch_scc1 {Lt}
    """)
    dma()
    a(f"""
    {Lt}:
    s_add_u32 s24, s24, 1
    s_cmp_lt_u32 s24, {NSTG-1}
    s_cbranch_scc1 {Ll}
    s_branch {L_exit}
    """)

def compute_loop(a, nt, R, vL, t, th_s, b_rows_off, tiles, ACC):
    NS, NSTG, STG = nt.NS, nt.NSTG, nt.STG
    nj = max(j for j, b in tiles) + 1; nb = len(b_rows_off)
    lA = R.alloc("lA"); lB = R.alloc("lB")
    aA = [R.alloc("aA0"), R.alloc("aA1")]; aB = [R.alloc("aB0"), R.alloc("aB1")]
    AF = [[R.alloc(f"AF{ks}{j}", 4) for j in range(nj)] for ks in range(2)]
    BF = [[R.alloc(f"BF{ks}{b}", 4) for b in range(nb)] for ks in range(2)]
    a(f"""
    v_and_b32 {vr(t[0])}, 31, {vr(vL)}
    v_lshrrev_b32 {vr(t[1])}, 2, {vr(t[0])}
    v_and_b32 {vr(t[1])}, 3, {vr(t[1])}
    v_lshrrev_b32 {vr(t[2])}, 5, {vr(vL)}
    v_xor_b32 {vr(t[1])}, {vr(t[1])}, {vr(t[2])}
    v_lshlrev_b32 {vr(t[1])}, 4, {vr(t[1])}
    v_lshlrev_b32 {vr(t[0])}, 6, {vr(t[0])}
    v_add_u32 {vr(t[0])}, {vr(t[0])}, {vr(t[1])}
    v_add_u32 {vr(lA)}, s{th_s}, {vr(t[0])}
    v_add_u32 {vr(lB)}, s{b_rows_off[0][0]}, {vr(t[0])}
    v_add_u32 {vr(lB)}, 8192, {vr(lB)}
    v_mov_b32 {vr(aA[0])}, {vr(lA)}
    v_xor_b32 {vr(aA[1])}, 32, {vr(lA)}
    v_mov_b32 {vr(aB[0])}, {vr(lB)}
    v_xor_b32 {vr(aB[1])}, 32, {vr(lB)}
    """)
    def reads(ks):
        s = ""
        for j in range(nj): s += f"ds_read_b128 {vr(AF[ks][j],4)}, {vr(aA[ks])} offset:{j*2048}\n"
        for b in range(nb): s += f"ds_read_b128 {vr(BF[ks][b],4)}, {vr(aB[ks])} offset:{b_rows_off[b][1]}\n"
        return s
    def mfmas(ks):
        return "".join(f"{MF} {vr(ACC[j][b],16)}, {vr(AF[ks][j],4)}, {vr(BF[ks][b],4)}, {vr(ACC[j][b],16)}\n" for j, b in tiles)
    nr = nj + nb
    Ll = a.label("c_loop"); Le = a.label("c_last"); Lx = a.label("c_done")
    a(f"""
    s_barrier
    s_mov_b32 s24, 0
    s_mov_b32 s25, 0
    """)
    a(reads(0))
    a(f"{Ll}:")
    a(reads(1))
    a(f"s_waitcnt lgkmcnt({nr})")
    a(mfmas(0))
    a(f"""
    s_cmp_eq_u32 s24, {NSTG-1}
    s_cbranch_scc1 {Le}
    s_add_u32 s25, s25, {STG}
    s_cmp_ge_u32 s25, {NS*STG}
    s_cselect_b32 s25, 0, s25
    v_add_u32 {vr(aA[0])}, s25, {vr(lA)}
    v_add_u32 {vr(aB[0])}, s25, {vr(lB)}
    s_waitcnt lgkmcnt(0)
    s_barrier
    """)
    a(reads(0))
    a(f"""
    v_xor_b32 {vr(aA[1])}, 32, {vr(aA[0])}
    v_xor_b32 {vr(aB[1])}, 32, {vr(aB[0])}
    """)
    a(mfmas(1))
    a(f"""
    s_add_u32 s24, s24, 1
    s_branch {Ll}
    {Le}:
    s_waitcnt lgkmcnt(0)
    """)
    a(mfmas(1))
    a("s_nop 15\ns_nop 3")
```

```python
from asmlib import *
from layout import *
from a1 import lam_from_regs
from nt import f2u

def gen_prep(a, wg="s2"):
    R = Regs(start=1, limit=128)
    vT = R.alloc("tid")
    t = [R.alloc(f"t{i}") for i in range(8)]
    def srd(d, lo, size):
        a(f"s_mov_b32 s{d}, s{lo}\ns_and_b32 s{d+1}, s{lo+1}, 0xffff\ns_mov_b32 s{d+2}, {size}\ns_mov_b32 s{d+3}, 0x20000")
    a(f"""
    s_load_dwordx4 s[4:7], s[0:1], 8
    s_load_dwordx4 s[8:11], s[0:1], 40
    s_load_dwordx2 s[12:13], s[0:1], 56       ; log_dt
    s_load_dwordx2 s[14:15], s[0:1], 88       ; wo
    s_load_dwordx2 s[16:17], s[0:1], 112      ; ws
    v_mov_b32 {vr(vT)}, v0
    s_waitcnt lgkmcnt(0)
    """)
    srd(20, 4, 1152); srd(24, 6, 1152); srd(28, 12, 1152); srd(32, 8, 576*1152); srd(36, 10, 576*1152); srd(40, 14, 576*1152); srd(44, 16, WS_END)
    WB = R.alloc("WB", 8)
    a(f"""
    s_lshr_b32 s48, {wg}, 3            ; kb
    s_and_b32 s49, {wg}, 7             ; nb
    s_mul_i32 s50, s48, {72*1152}
    s_mul_i32 s51, s49, 144
    s_add_u32 s50, s50, s51
    """)
    LA = [R.alloc("LA0"), R.alloc("LA1")]
    for u in range(2):
        a(f"""
        v_add_u32 {vr(t[0])}, {512*u}, {vr(vT)}
        v_mul_u32_u24 {vr(t[1])}, 7282, {vr(t[0])}
        v_lshrrev_b32 {vr(t[1])}, 16, {vr(t[1])}
        v_mul_u32_u24 {vr(t[2])}, 9, {vr(t[1])}
        v_sub_u32 {vr(t[2])}, {vr(t[0])}, {vr(t[2])}      ; ch
        v_mul_u32_u24 {vr(t[3])}, 1152, {vr(t[1])}
        v_lshlrev_b32 {vr(t[4])}, 4, {vr(t[2])}
        v_add_u32 {vr(t[3])}, {vr(t[3])}, {vr(t[4])}
        v_mul_u32_u24 {vr(LA[u])}, 160, {vr(t[1])}
        v_add_u32 {vr(LA[u])}, {vr(LA[u])}, {vr(t[4])}
        buffer_load_dwordx4 {vr(WB+4*u,4)}, {vr(t[3])}, s[40:43], s50 offen
        """)
    Lskip = a.label("prep_skipc")
    LR = R.alloc("LR", 2); LI = R.alloc("LI", 2); LD = R.alloc("LD", 2)
    cr = R.alloc("cr", 2); ci = R.alloc("ci", 2); lb = R.alloc("lb", 2)
    CR = R.alloc("CR", 9); CI = R.alloc("CI", 9); OUT = R.alloc("OUT", 2)
    a(f"""
    v_cmp_gt_u32 vcc, 288, {vr(vT)}
    s_and_saveexec_b64 s[52:53], vcc
    s_cbranch_execz {Lskip}
    v_lshlrev_b32 {vr(t[0])}, 2, {vr(vT)}
    buffer_load_dword {vr(t[1])}, {vr(t[0])}, s[20:23], 0 offen
    buffer_load_dword {vr(t[2])}, {vr(t[0])}, s[24:27], 0 offen
    buffer_load_dword {vr(t[3])}, {vr(t[0])}, s[28:31], 0 offen
    s_mul_i32 s54, {wg}, {9*1152}
    """)
    for r in range(9):
        a(f"""
        buffer_load_dword {vr(CR+r)}, {vr(t[0])}, s[32:35], s54 offen
        buffer_load_dword {vr(CI+r)}, {vr(t[0])}, s[36:39], s54 offen
        s_add_u32 s54, s54, 1152
        """)
    a(f"""
    s_waitcnt vmcnt(18)
    v_lshlrev_b32 {vr(LR)}, 16, {vr(t[1])}
    v_and_b32 {vr(LR+1)}, 0xffff0000, {vr(t[1])}
    v_lshlrev_b32 {vr(LI)}, 16, {vr(t[2])}
    v_and_b32 {vr(LI+1)}, 0xffff0000, {vr(t[2])}
    v_lshlrev_b32 {vr(LD)}, 16, {vr(t[3])}
    v_and_b32 {vr(LD+1)}, 0xffff0000, {vr(t[3])}
    """)
    for e in range(2):
        lam_from_regs(a, LR+e, LI+e, LD+e, lb, lb+1, (t[4], t[5], t[6]), (cr+e, ci+e))
    a(f"""
    v_lshlrev_b32 {vr(t[0])}, 3, {vr(vT)}
    s_mul_i32 s54, {wg}, {9*2304}
    s_add_u32 s54, s54, {WS_CPP}
    """)
    for r in range(9):
        a(f"s_waitcnt vmcnt({2*(8-r)})")
        for e in range(2):
            if e == 0: a(f"v_lshlrev_b32 {vr(t[1])}, 16, {vr(CR+r)}\nv_lshlrev_b32 {vr(t[2])}, 16, {vr(CI+r)}")
            else:      a(f"v_and_b32 {vr(t[1])}, 0xffff0000, {vr(CR+r)}\nv_and_b32 {vr(t[2])}, 0xffff0000, {vr(CI+r)}")
            a(f"""
            v_mul_f32 {vr(t[3])}, {vr(t[1])}, {vr(cr+e)}
            v_fma_f32 {vr(t[3])}, -{vr(t[2])}, {vr(ci+e)}, {vr(t[3])}
            v_mul_f32 {vr(t[4])}, {vr(t[1])}, {vr(ci+e)}
            v_fma_f32 {vr(t[4])}, {vr(t[2])}, {vr(cr+e)}, {vr(t[4])}
            v_mul_f32 {vr(t[3])}, 2.0, {vr(t[3])}
            v_mul_f32 {vr(t[4])}, -2.0, {vr(t[4])}
            v_cvt_pk_bf16_f32 {vr(OUT+e)}, {vr(t[3])}, {vr(t[4])}
            """)
        a(f"""
        buffer_store_dwordx2 {vr(OUT,2)}, {vr(t[0])}, s[44:47], s54 offen
        s_add_u32 s54, s54, 2304
        s_nop 0
        """)
    a(f"{Lskip}:\ns_mov_b64 exec, -1")
    Lw2 = a.label("prep_w2")
    a(f"""
    s_waitcnt vmcnt(0)
    ds_write_b128 {vr(LA[0])}, {vr(WB,4)}
    v_cmp_gt_u32 vcc, {648-512}, {vr(vT)}
    s_and_saveexec_b64 s[52:53], vcc
    s_cbranch_execz {Lw2}
    ds_write_b128 {vr(LA[1])}, {vr(WB+4,4)}
    {Lw2}:
    s_mov_b64 exec, -1
    s_waitcnt lgkmcnt(0)
    s_barrier
    """)
    G = R.alloc("G", 8); PK = R.alloc("PK", 4)
    for u in range(2):
        Ls = a.label("prep_o")
        a(f"""
        v_add_u32 {vr(t[0])}, {512*u}, {vr(vT)}
        v_cmp_gt_u32 vcc, 648, {vr(t[0])}
        s_and_saveexec_b64 s[52:53], vcc
        s_cbranch_execz {Ls}
        v_mul_u32_u24 {vr(t[1])}, 7282, {vr(t[0])}
        v_lshrrev_b32 {vr(t[1])}, 16, {vr(t[1])}          ; n
        v_mul_u32_u24 {vr(t[2])}, 9, {vr(t[1])}
        v_sub_u32 {vr(t[2])}, {vr(t[0])}, {vr(t[2])}      ; ch
        v_lshrrev_b32 {vr(t[3])}, 1, {vr(t[2])}
        v_mul_u32_u24 {vr(t[3])}, 18, {vr(t[3])}
        v_and_b32 {vr(t[4])}, 1, {vr(t[2])}
        v_lshlrev_b32 {vr(t[4])}, 2, {vr(t[4])}
        v_add_u32 {vr(t[3])}, {vr(t[3])}, {vr(t[4])}
        v_mul_u32_u24 {vr(t[3])}, 160, {vr(t[3])}
        v_lshlrev_b32 {vr(t[4])}, 1, {vr(t[1])}           ; n*2
        v_add_u32 {vr(t[3])}, {vr(t[3])}, {vr(t[4])}
        v_cmp_eq_u32 vcc, 8, {vr(t[2])}
        """)
        for e in range(8):
            main = (e if e < 4 else e + 4) * 160
            tail = (18*(e>>1) + 16 + (e&1)) * 160
            a(f"""
            v_add_u32 {vr(t[5])}, {main}, {vr(t[3])}
            v_add_u32 {vr(t[6])}, {tail}, {vr(t[4])}
            v_cndmask_b32 {vr(t[5])}, {vr(t[5])}, {vr(t[6])}, vcc
            ds_read_u16 {vr(G+e)}, {vr(t[5])}
            """)
        a("s_waitcnt lgkmcnt(0)")
        for e in range(4):
            a(f"v_lshlrev_b32 {vr(G+2*e+1)}, 16, {vr(G+2*e+1)}\nv_or_b32 {vr(PK+e)}, {vr(G+2*e)}, {vr(G+2*e+1)}")
        a(f"""
        v_mul_u32_u24 {vr(t[1])}, 1152, {vr(t[1])}
        v_lshlrev_b32 {vr(t[5])}, 4, {vr(t[2])}
        s_lshl_b32 s54, s48, 7
        v_add_u32 {vr(t[5])}, s54, {vr(t[5])}
        s_lshl_b32 s54, s48, 4
        s_add_u32 s54, s54, 1024
        v_mov_b32 {vr(t[6])}, s54
        v_cndmask_b32 {vr(t[5])}, {vr(t[5])}, {vr(t[6])}, vcc
        v_add_u32 {vr(t[1])}, {vr(t[1])}, {vr(t[5])}
        s_mul_i32 s54, s49, {72*1152}
        s_add_u32 s54, s54, {WS_WOT}
        buffer_store_dwordx4 {vr(PK,4)}, {vr(t[1])}, s[44:47], s54 offen
        {Ls}:
        s_mov_b64 exec, -1
        """)
    a("s_endpgm")
    return R.next
```

```python
import sys
sys.path.insert(0, '../bench')
from asmlib import *
from layout import *
import k1, a1, k3, attn2, prep
NAME = "concat_heads__ssm_conv_s5__mha_block__prompt"
def build(stamp=False, exp=('prio','hb')):
    a = Asm()
    hdr = open('cdna_kernels/' + NAME + '.s.ref').read().split("; Override launch")[0]
    launches = [("k1_kernel", 256, 512, k1.K1_LDS), ("a1_kernel", 144, 512, a1.A1_LDS), ("attn_kernel", 256, 512, ATTN_LDS), ("k3_kernel", 288, 512, k3.G2_LDS)]
    a.raw(hdr.rstrip())
    for n, g, b, l in launches: a.raw(f"; @launch kernel={n} grid=({g},1,1) block=({b},1,1) lds={l}")
    a.raw('.amdgcn_target "amdgcn-amd-amdhsa--gfx950"\n.text')
    descs = []
    def begin(n): a.raw(f'.globl {n}\n.p2align 8\n.type {n},@function\n{n}:')
    begin("k1_kernel")
    a("s_cmp_ge_u32 s2, 256\ns_cbranch_scc1 L_k1_exit\ns_cmp_ge_u32 s2, 192\ns_cbranch_scc1 L_k1_prep")
    nv = k1.gen_qkv(a, stamp=stamp)
    a.raw("L_k1_prep:")
    a("s_sub_u32 s3, s2, 192")
    nv2 = prep.gen_prep(a, wg="s3")
    a.raw("L_k1_exit:\n  s_endpgm")
    descs.append(kernel_desc("k1_kernel", (max(nv,nv2)+7)//8*8))
    begin("a1_kernel")
    a("s_cmp_ge_u32 s2, 144\ns_cbranch_scc1 L_a1_exit")
    nv = a1.gen_a1(a, stamp=stamp)
    a.raw("L_a1_exit:\n  s_endpgm")
    descs.append(kernel_desc("a1_kernel", 128))
    begin("attn_kernel")
    a("s_cmp_ge_u32 s2, 256\ns_cbranch_scc1 L_attn_exit")
    nv = attn2.gen_attn(a, stamp=False, exp=exp)
    a.raw("L_attn_exit:\n  s_endpgm")
    descs.append(kernel_desc("attn_kernel", 128))
    begin("k3_kernel")
    a("s_cmp_ge_u32 s2, 288\ns_cbranch_scc1 L_k3_exit\ns_cmp_ge_u32 s2, 144\ns_cbranch_scc1 L_k3_o")
    nv = k3.gen_g2(a, 'y', stamp=stamp)
    a.raw("L_k3_o:")
    a("s_sub_u32 s3, s2, 144")
    nv = k3.gen_g2(a, 'o', wg="s3", stamp=stamp)
    a.raw("L_k3_exit:\n  s_endpgm")
    descs.append(kernel_desc("k3_kernel", 128))
    a.raw('.section .rodata,"a"')
    for d in descs: a.raw(d)
    return a.text(), launches
if __name__ == "__main__":
    stamp = 'stamp' in sys.argv
    txt, launches = build(stamp)
    if stamp:
        import mkco, json
        mkco.build(txt, "full_stamp.co", 15)
        json.dump(launches, open("launches.json","w"))
    else:
        open('cdna_kernels/' + NAME + '.s', 'w').write(txt)
        import mkco, json
        mkco.build(txt, "full.co", 15)
        json.dump(launches, open("launches.json","w"))
    print("bytes", len(txt))
```

```python
from asmlib import *
from layout import *
from nt2 import *

LOG2E = math.log2(math.e)
A1_NS = 5; A1_NSTG = 18
A1_LDS = A1_NS * 16384

def lambda_setup(a, vP2, dstLr, dstLi, tmp, srd_lre, srd_lim, srd_ldt, want_coef=None):
    t0,t1,t2,t3,t4,t5 = tmp[:6]
    a(f"""
    buffer_load_ushort {vr(t0)}, {vr(vP2)}, s[{srd_lre}:{srd_lre+3}], 0 offen
    buffer_load_ushort {vr(t1)}, {vr(vP2)}, s[{srd_lim}:{srd_lim+3}], 0 offen
    buffer_load_ushort {vr(t2)}, {vr(vP2)}, s[{srd_ldt}:{srd_ldt+3}], 0 offen
    s_waitcnt vmcnt(0)
    v_lshlrev_b32 {vr(t0)}, 16, {vr(t0)}          ; Lre
    v_lshlrev_b32 {vr(t1)}, 16, {vr(t1)}          ; Lim
    v_lshlrev_b32 {vr(t2)}, 16, {vr(t2)}          ; log_dt
    """)
    lam_from_regs(a, t0, t1, t2, dstLr, dstLi, (t3, t4, t5), want_coef)

def lam_from_regs(a, rLre, rLim, rLdt, dstLr, dstLi, tmp, want_coef=None):
    t3,t4,t5 = tmp[:3]
    a(f"""
    v_mul_f32 {vr(rLdt)}, {hex(f2u(LOG2E))}, {vr(rLdt)}
    v_exp_f32 {vr(rLdt)}, {vr(rLdt)}
    s_nop 0
    v_cvt_pk_bf16_f32 {vr(rLdt)}, {vr(rLdt)}, {vr(rLdt)}
    v_and_b32 {vr(rLdt)}, 0xffff0000, {vr(rLdt)}
    v_mul_f32 {vr(t3)}, {vr(rLdt)}, {vr(rLre)}      ; dt*Lre
    v_mul_f32 {vr(t4)}, {vr(rLdt)}, {vr(rLim)}      ; dt*Lim
    v_mul_f32 {vr(t3)}, {hex(f2u(LOG2E))}, {vr(t3)}
    v_exp_f32 {vr(t3)}, {vr(t3)}                    ; magnitude
    v_mul_f32 {vr(t4)}, 0.15915494, {vr(t4)}        ; revolutions
    v_fract_f32 {vr(t4)}, {vr(t4)}
    v_cos_f32 {vr(t5)}, {vr(t4)}
    v_sin_f32 {vr(t4)}, {vr(t4)}
    s_nop 0
    v_mul_f32 {vr(dstLr)}, {vr(t3)}, {vr(t5)}
    v_mul_f32 {vr(dstLi)}, {vr(t3)}, {vr(t4)}
    """)
    if want_coef:
        cr, ci = want_coef
        a(f"""
        v_add_f32 {vr(t3)}, -1.0, {vr(dstLr)}          ; nr
        v_mul_f32 {vr(t4)}, {vr(rLre)}, {vr(rLre)}
        v_fma_f32 {vr(t4)}, {vr(rLim)}, {vr(rLim)}, {vr(t4)}
        v_rcp_f32 {vr(t4)}, {vr(t4)}
        v_mul_f32 {vr(cr)}, {vr(t3)}, {vr(rLre)}
        v_fma_f32 {vr(cr)}, {vr(dstLi)}, {vr(rLim)}, {vr(cr)}
        v_mul_f32 {vr(ci)}, {vr(dstLi)}, {vr(rLre)}
        v_fma_f32 {vr(ci)}, -{vr(t3)}, {vr(rLim)}, {vr(ci)}
        v_mul_f32 {vr(cr)}, {vr(cr)}, {vr(t4)}
        v_mul_f32 {vr(ci)}, {vr(ci)}, {vr(t4)}
        """)

def csq(a, dr, di, sr_, si, tmp):
    a(f"""
    v_mul_f32 {vr(tmp)}, {vr(sr_)}, {vr(si)}
    v_mul_f32 {vr(dr)}, {vr(sr_)}, {vr(sr_)}
    v_fma_f32 {vr(dr)}, -{vr(si)}, {vr(si)}, {vr(dr)}
    v_add_f32 {vr(di)}, {vr(tmp)}, {vr(tmp)}
    """)

def cmad(a, dr, di, lr, li, pr, pi, ur, ui):
    a(f"""
    v_fma_f32 {vr(dr)}, {vr(lr)}, {vr(pr)}, {vr(ur)}
    v_fma_f32 {vr(di)}, {vr(lr)}, {vr(pi)}, {vr(ui)}
    v_fma_f32 {vr(dr)}, -{vr(li)}, {vr(pi)}, {vr(dr)}
    v_fma_f32 {vr(di)}, {vr(li)}, {vr(pr)}, {vr(di)}
    """)

def gen_a1(a, wg="s2", stamp=False, signal_h=False, prio=None, then_g2=None, nobegin=False):
    R = Regs(start=1, limit=128)
    nt = NT(128, A1_NS, A1_NSTG)
    if stamp and not nobegin: stamp_begin(a)
    if prio is not None: a(f"s_setprio {prio}")
    a(f"""
    s_load_dwordx4 s[8:11], s[0:1], 8
    s_load_dwordx2 s[16:17], s[0:1], 56      ; log_dt
    s_load_dwordx4 s[60:63], s[0:1], 104
    s_and_b32 s26, {wg}, 15                   ; rt
    s_lshr_b32 s27, {wg}, 4                   ; pg
    """)
    vL, t = lane_consts(a, R)
    L_ld = a.label("a1_loader"); L_exit = a.label("a1_exit")
    def srd(d, lo, size):
        a(f"s_mov_b32 s{d}, s{lo}\ns_and_b32 s{d+1}, s{lo+1}, 0xffff\ns_mov_b32 s{d+2}, {size}\ns_mov_b32 s{d+3}, 0x20000")
    a("s_waitcnt lgkmcnt(0)")
    a(f"s_cmp_ge_u32 s20, 4\ns_cbranch_scc1 {L_ld}")
    lr = R.alloc("lr"); li = R.alloc("li")
    ACC = [[R.alloc(f"ACC{j}{b}", 16) for b in range(2)] for j in range(2)]
    mark0 = R.next
    vP = R.alloc("vP")
    tt0 = R.alloc("tt", 6, align=2)
    tt = [tt0 + i for i in range(6)]
    srd(32, 8, 1152); srd(36, 10, 1152); srd(40, 16, 1152)
    a(f"""
    s_lshr_b32 s28, s20, 1            ; th
    s_and_b32 s29, s20, 1             ; pb
    s_lshl_b32 s30, s27, 6
    s_lshl_b32 s31, s29, 5
    s_add_u32 s30, s30, s31
    v_and_b32 {vr(vP)}, 31, {vr(vL)}
    v_add_u32 {vr(vP)}, s30, {vr(vP)}              ; p
    v_lshlrev_b32 {vr(tt[5])}, 1, {vr(vP)}
    """)
    lambda_setup(a, tt[5], lr, li, [tt[0], tt[1], tt[2], tt[3], tt[4], t[3]], 32, 36, 40)
    R.next = mark0
    for j in range(2):
        for b in range(2):
            for i in range(16): a(f"v_mov_b32 {vr(ACC[j][b]+i)}, 0")
    a(f"s_lshl_b32 s28, s28, 12\ns_lshl_b32 s29, s29, 11")
    mark = R.next
    lag = compute_loop(a, nt, R, vL, t, 28, 29, [0, 4096], [(0,0),(0,1),(1,0),(1,1)], ACC, 3)
    if stamp: stamp_mark(a, 0)
    R.next = mark0
    vP = R.alloc("vP")
    tt0 = R.alloc("tt", 6, align=2)
    tt = [tt0 + i for i in range(6)]
    l32r = R.alloc("l32r"); l32i = R.alloc("l32i"); l64r = R.alloc("l64r"); l64i = R.alloc("l64i")
    a(f"v_and_b32 {vr(vP)}, 31, {vr(vL)}\nv_add_u32 {vr(vP)}, s30, {vr(vP)}")
    csq(a, l32r, l32i, lr, li, tt[0])
    for _ in range(4): csq(a, l32r, l32i, l32r, l32i, tt[0])
    csq(a, l64r, l64i, l32r, l32i, tt[0])
    RE = [ACC[0][0], ACC[1][0]]; IM = [ACC[0][1], ACC[1][1]]
    er = R.alloc("er"); ei = R.alloc("ei"); e2r = R.alloc("e2r"); e2i = R.alloc("e2i")
    gr = R.alloc("gr"); gi = R.alloc("gi")
    EL = R.alloc("EL", 32, align=2)
    seq = [(j, i) for j in range(2) for i in range(16)]
    a(f"v_mov_b32 {vr(er)}, {vr(RE[0])}\nv_mov_b32 {vr(ei)}, {vr(IM[0])}")
    cur = (er, ei); oth = (e2r, e2i)
    for (j, i) in seq[1:]:
        cmad(a, oth[0], oth[1], lr, li, cur[0], cur[1], RE[j]+i, IM[j]+i)
        cur, oth = oth, cur
    Er, Ei = cur; Fr, Fi = oth
    a(f"""
    v_mov_b32 {vr(Fr)}, {vr(Er)}
    v_mov_b32 {vr(Fi)}, {vr(Ei)}
    s_nop 1
    v_permlane32_swap_b32 {vr(Er)}, {vr(Fr)}
    v_permlane32_swap_b32 {vr(Ei)}, {vr(Fi)}
    s_nop 1
    """)
    cmad(a, tt[0], tt[1], l32r, l32i, Er, Ei, Fr, Fi)
    srd(32, 62, WS_END)
    a(f"""
    s_add_u32 s36, s62, {WS_E}
    s_addc_u32 s37, s63, 0
    s_and_b32 s37, s37, 0xffff
    s_mov_b32 s38, {32*576*8}
    s_mov_b32 s39, 0x20000
    s_lshr_b32 s28, s20, 1
    s_lshl_b32 s44, s26, 1
    s_add_u32 s44, s44, s28            ; chunk c = 2rt + th
    s_mul_i32 s45, s44, 576
    v_add_u32 {vr(tt[2])}, s45, {vr(vP)}
    v_lshlrev_b32 {vr(tt[2])}, 3, {vr(tt[2])}     ; (c*576 + p)*8
    s_mov_b32 exec_hi, 0
    buffer_store_dwordx2 {vr(tt[0],2)}, {vr(tt[2])}, s[36:39], 0 offen sc1
    s_mov_b64 exec, -1
    s_lshr_b32 s46, s30, 5             ; p block 0..17
    s_lshl_b32 s46, s46, 8
    s_add_u32 s46, s46, {WS_FLAG}
    v_mov_b32 {vr(tt[3])}, s46
    v_mov_b32 {vr(tt[4])}, 1
    s_waitcnt vmcnt(0)
    s_mov_b64 exec, 1
    global_atomic_add {vr(tt[3])}, {vr(tt[4])}, s[62:63]
    s_mov_b64 exec, -1
    """.replace("v_mov_b32 {vr(tt[0],2)}", ""))
    Lp = a.label("a1_poll")
    a(f"""
    s_mov_b32 s48, 0
    {Lp}:
    global_load_dword {vr(tt[4])}, {vr(tt[3])}, s[62:63] sc1
    s_waitcnt vmcnt(0)
    v_readfirstlane_b32 s47, {vr(tt[4])}
    s_cmp_ge_u32 s47, 32
    s_cbranch_scc1 {Lp}_ok
    s_sleep 6
    s_add_u32 s48, s48, 1
    s_cmp_lt_u32 s48, 200000
    s_cbranch_scc1 {Lp}
    {Lp}_ok:
    """)
    if stamp: stamp_mark(a, 1)
    a(f"""
    v_subrev_u32 {vr(tt[2])}, {31*4608}, {vr(tt[2])}      ; index c-31  (k = 30)
    v_mov_b32 {vr(gr)}, 0
    v_mov_b32 {vr(gi)}, 0
    """)
    cur = (gr, gi); oth = (tt[0], tt[1])
    for batch in range(2):
        n = 16 if batch == 0 else 15
        for k in range(n):
            a(f"buffer_load_dwordx2 {vr(EL+2*k,2)}, {vr(tt[2])}, s[36:39], 0 offen sc1\nv_add_u32 {vr(tt[2])}, 4608, {vr(tt[2])}")
        for k in range(n):
            a(f"s_waitcnt vmcnt({n-1-k})")
            cmad(a, oth[0], oth[1], l64r, l64i, cur[0], cur[1], EL+2*k, EL+2*k+1)
            cur, oth = oth, cur
    Gr, Gi = cur
    a(f"v_cmp_gt_u32 vcc, 32, {vr(vL)}")
    cmad(a, oth[0], oth[1], l32r, l32i, Gr, Gi, Er, Ei)
    a(f"""
    v_cndmask_b32 {vr(Gr)}, {vr(oth[0])}, {vr(Gr)}, vcc
    v_cndmask_b32 {vr(Gi)}, {vr(oth[1])}, {vr(Gi)}, vcc
    """)
    HA = [R.alloc(f"HA{g}") for g in range(4)]
    a(f"""
    v_lshrrev_b32 {vr(tt[2])}, 4, {vr(vP)}                   ; p/16
    v_lshlrev_b32 {vr(tt[2])}, 13, {vr(tt[2])}
    v_and_b32 {vr(tt[3])}, 3, {vr(vP)}
    v_lshlrev_b32 {vr(tt[3])}, 2, {vr(tt[3])}
    v_add_u32 {vr(tt[2])}, {vr(tt[2])}, {vr(tt[3])}
    v_lshrrev_b32 {vr(tt[3])}, 5, {vr(vL)}
    v_lshlrev_b32 {vr(tt[3])}, 11, {vr(tt[3])}               ; hh*32*64
    v_add_u32 {vr(tt[2])}, {vr(tt[2])}, {vr(tt[3])}
    v_lshrrev_b32 {vr(tt[3])}, 2, {vr(vP)}
    v_and_b32 {vr(tt[3])}, 3, {vr(tt[3])}                    ; c
    """)
    for g in range(4):
        a(f"v_xor_b32 {vr(tt[4])}, {g}, {vr(tt[3])}\nv_lshlrev_b32 {vr(tt[4])}, 4, {vr(tt[4])}\nv_add_u32 {vr(HA[g])}, {vr(tt[2])}, {vr(tt[4])}")
    a(f"""
    s_mul_i32 s45, s26, {36*8192}
    s_lshr_b32 s28, s20, 1
    s_lshl_b32 s28, s28, 12                                  ; th*64*64
    s_add_u32 s45, s45, s28
    s_add_u32 s45, s45, {WS_HP}
    """)
    pr, pi = Gr, Gi
    for n_, (j, i) in enumerate(seq):
        cmad(a, RE[j]+i, IM[j]+i, lr, li, pr, pi, RE[j]+i, IM[j]+i)
        pr, pi = RE[j]+i, IM[j]+i
        d = EL + (n_ % 16)
        a(f"""
        v_cvt_pk_bf16_f32 {vr(d)}, {vr(pr)}, {vr(pi)}
        buffer_store_dword {vr(d)}, {vr(HA[(i>>2)&3])}, s[32:35], s45 offen offset:{(16*j+i)*64} sc1
        """)
    if stamp: stamp_mark(a, 2)
    if signal_h:
        a(f"""
        s_waitcnt vmcnt(0)
        s_lshl_b32 s46, s26, 8
        s_add_u32 s46, s46, {WS_FLAG + 32*256}
        v_mov_b32 {vr(tt[3])}, s46
        v_mov_b32 {vr(tt[4])}, 1
        s_mov_b64 exec, 1
        global_atomic_add {vr(tt[3])}, {vr(tt[4])}, s[62:63]
        s_mov_b64 exec, -1
        """)
    a(f"s_branch {L_exit}")
    nv = R.next
    a(f"{L_ld}:")
    vL16 = 8
    srd(28, 62, WS_END)
    a(f"""
    s_sub_u32 s21, s20, 4              ; lw
    v_lshlrev_b32 {vr(vL16)}, 4, {vr(vL)}
    s_lshl_b32 s46, s21, 10
    s_mul_i32 s44, s26, {18*8192}
    s_add_u32 s44, s44, s46
    s_add_u32 s44, s44, {WS_XP}
    s_mul_i32 s45, s27, {18*8192}
    s_add_u32 s45, s45, s46
    s_add_u32 s45, s45, {WS_BP}
    """)
    loader(a, nt, vL16, 28, 44, 45, L_exit, lag, prof=False)
    a(f"{L_exit}:")
    if then_g2:
        a(f"s_cmp_lt_u32 {wg}, 32\ns_cbranch_scc1 {then_g2}")
    if stamp:
        a("s_waitcnt vmcnt(0)")
        stamp_end(a, 104)
    a("s_endpgm")
    return max(nv, R.next)
```

```python
from asmlib import *
from layout import *

def gen_attn(a, stamp=False, exp=()):
    R = Regs(start=1, limit=128)
    vL = R.alloc("lane"); vL16 = R.alloc("l16")
    vT = R.alloc("tmp0"); vT2 = R.alloc("tmp1"); vT3 = R.alloc("tmp2")
    aK1 = R.alloc("aK1"); aK2 = R.alloc("aK2"); aV = R.alloc("aV")
    lK1 = R.alloc("lK1"); lK2 = R.alloc("lK2"); lV = R.alloc("lV")
    Q1 = [R.alloc("Q1A", 4), R.alloc("Q1B", 4)]; Q2 = [R.alloc("Q2A", 4), R.alloc("Q2B", 4)]
    KA = R.alloc("KA", 4); KB = R.alloc("KB", 4)
    VA = [R.alloc("VA0", 4), R.alloc("VA1", 4)]
    VB = [R.alloc("VB0", 4), R.alloc("VB1", 4)]
    P = R.alloc("P", 8)
    vCA = R.alloc("cntaddr"); vOne = vT3; vPoll = vT2
    O = [R.alloc("OA", 16), R.alloc("OB", 16)]
    Sb = [R.alloc("SA", 16), R.alloc("SB", 16)]
    nv = R.next
    T = TILE_KV; SLOT = 8 * T
    NL3 = (T - 2048) // 16
    MF = "v_mfma_f32_32x32x16_bf16"
    L_stage = a.label("attn_stage"); L_nodma = a.label("attn_nodma"); L_bar = a.label("attn_bar")
    L_fall = a.label("attn_fallback"); L_store = a.label("attn_store")
    if stamp: stamp_begin(a)
    if 'prio' in exp: a("s_setprio 3")
    a(f"""
    s_load_dwordx2 s[4:5], s[0:1], 112
    v_and_b32 {vr(vL)}, 63, v0
    v_lshrrev_b32 {vr(vT)}, 6, v0
    v_lshlrev_b32 {vr(vL16)}, 4, {vr(vL)}
    v_readfirstlane_b32 s14, {vr(vT)}
    s_and_b32 s12, s2, 7
    s_lshr_b32 s13, s2, 3
    s_and_b32 s13, s13, 3
    s_lshl_b32 s13, s13, 3
    s_add_u32 s12, s12, s13          ; h
    s_lshr_b32 s13, s2, 5
    s_mul_i32 s15, s12, {64*T}
    s_add_u32 s15, s15, {WS_KV}
    s_and_b32 s19, s14, 3            ; q-group g
    s_lshr_b32 s23, s14, 2
    s_lshl_b32 s17, s23, 5
    s_add_u32 s17, s17, s19
    s_mul_i32 s17, s17, {T}
    s_add_u32 s17, s17, s15
    s_mul_i32 s18, s14, {T}
    s_lshl_b32 s21, s13, 3
    s_lshl_b32 s40, s19, 1
    s_add_u32 s21, s21, s40
    s_lshl_b32 s22, s12, 6
    s_add_u32 s22, s22, s21
    s_mul_i32 s22, s22, {TILE_Q}
    s_lshl_b32 s40, s12, 6
    v_and_b32 {vr(vT)}, 31, {vr(vL)}
    v_lshlrev_b32 {vr(lK2)}, 2, {vr(vT)}         ; (l&31)*4
    s_waitcnt lgkmcnt(0)
    s_mov_b32 s8, s4
    s_and_b32 s9, s5, 0xffff
    s_mov_b32 s10, {WS_END}
    s_mov_b32 s11, 0x20000
    """)
    def dma_stage():
        a(f"""
        s_mov_b32 m0, s18
        s_mov_b64 exec, {hex((1<<NL3)-1)}
        buffer_load_dwordx4 {vr(vL16)}, s[8:11], s17 offen offset:2048 lds
        s_mov_b64 exec, -1
        buffer_load_dwordx4 {vr(vL16)}, s[8:11], s17 offen lds
        buffer_load_dwordx4 {vr(vL16)}, s[8:11], s17 offen offset:1024 lds
        """)
    dma_stage()
    a(f"""
    s_add_u32 s17, s17, {4*T}
    s_add_u32 s18, s18, {SLOT}
    buffer_load_dwordx4 {vr(Q1[0],4)}, {vr(vL16)}, s[8:11], s22 offen
    buffer_load_dword {vr(Q2[0])}, {vr(lK2)}, s[8:11], s22 offen offset:1024
    buffer_load_dwordx4 {vr(Q1[1],4)}, {vr(vL16)}, s[8:11], s22 offen offset:{TILE_Q}
    buffer_load_dword {vr(Q2[1])}, {vr(lK2)}, s[8:11], s22 offen offset:{TILE_Q+1024}
    s_add_u32 s6, s4, s40
    s_addc_u32 s7, s5, 0
    s_add_u32 s6, s6, {WS_KMAX}
    s_addc_u32 s7, s7, 0
    s_load_dwordx16 s[24:39], s[6:7], 0
    """)
    for st in range(2):
        dma_stage()
        a(f"s_add_u32 s17, s17, {4*T}\ns_add_u32 s18, s18, {SLOT}")
    a(f"""
    s_mul_i32 s41, s23, {4*T}
    v_add_u32 {vr(lK1)}, s41, {vr(vL16)}
    v_add_u32 {vr(lK2)}, 1024, {vr(lK2)}
    v_add_u32 {vr(lK2)}, s41, {vr(lK2)}
    v_min_u32 {vr(vT3)}, 19, {vr(vT)}
    v_lshlrev_b32 {vr(vT3)}, 4, {vr(vT3)}
    v_lshrrev_b32 {vr(vT2)}, 5, {vr(vL)}          ; hh
    v_mul_u32_u24 {vr(vT2)}, {VHH}, {vr(vT2)}
    v_add_u32 {vr(lV)}, {vr(vT3)}, {vr(vT2)}
    v_add_u32 {vr(lV)}, 1152, {vr(lV)}
    v_add_u32 {vr(aV)}, s41, {vr(lV)}
    v_mov_b32 {vr(aK1)}, {vr(lK1)}
    v_mov_b32 {vr(aK2)}, {vr(lK2)}
    s_mov_b32 s20, 0
    s_lshl_b32 s41, s23, 2
    s_add_u32 s41, s41, {4*SLOT}
    v_mov_b32 {vr(vCA)}, s41
    s_mul_i32 s41, s23, {4*T}
    v_mov_b32 {vr(KB+1)}, 0x3f80
    v_mov_b32 {vr(KB+2)}, 0
    v_mov_b32 {vr(KB+3)}, 0
    """)
    for b in range(2):
        for i in range(16): a(f"v_mov_b32 {vr(O[b]+i)}, 0")
        a(f"v_mov_b32 {vr(Q2[b]+2)}, 0\nv_mov_b32 {vr(Q2[b]+3)}, 0")
    for i in range(4): a(f"v_mov_b32 {vr(VB[1]+i)}, 0\nv_mov_b32 {vr(P+4+i)}, 0")
    a("s_waitcnt lgkmcnt(0)")
    for i in range(1, 16): a(f"s_max_u32 s24, s24, s{24+i}")
    a(f"""
    s_waitcnt vmcnt(6)
    v_cmp_gt_u32 vcc, 32, {vr(vL)}              ; lanes < 32
    v_mov_b32 {vr(vT2)}, 0
    """)
    for b in range(2):
        a(f"""
        s_nop 0
        v_cndmask_b32 {vr(Q2[b])}, {vr(vT2)}, {vr(Q2[b])}, vcc
        v_mov_b32 {vr(vT)}, 0
        v_dot2_f32_bf16 {vr(vT)}, {vr(Q1[b])}, {vr(Q1[b])}, {vr(vT)}
        v_dot2_f32_bf16 {vr(vT)}, {vr(Q1[b]+1)}, {vr(Q1[b]+1)}, {vr(vT)}
        v_dot2_f32_bf16 {vr(vT)}, {vr(Q1[b]+2)}, {vr(Q1[b]+2)}, {vr(vT)}
        v_dot2_f32_bf16 {vr(vT)}, {vr(Q1[b]+3)}, {vr(Q1[b]+3)}, {vr(vT)}
        v_dot2_f32_bf16 {vr(vT)}, {vr(Q2[b])}, {vr(Q2[b])}, {vr(vT)}
        s_nop 2
        v_mov_b32 {vr(vT3)}, {vr(vT)}
        s_nop 1
        v_permlane32_swap_b32 {vr(vT)}, {vr(vT3)}
        s_nop 1
        v_add_f32 {vr(vT)}, {vr(vT)}, {vr(vT3)}      ; |q|^2
        v_mul_f32 {vr(vT)}, s24, {vr(vT)}
        v_sqrt_f32 {vr(vT)}, {vr(vT)}
        s_nop 0
        v_mul_f32 {vr(vT)}, 0x3f810000, {vr(vT)}     ; * (1+2^-7)
        v_add_u32 {vr(vT)}, 0xffff, {vr(vT)}
        v_lshrrev_b32 {vr(vT)}, 16, {vr(vT)}
        v_or_b32 {vr(vT)}, 0x8000, {vr(vT)}
        v_cndmask_b32 {vr(Q2[b]+1)}, {vr(vT2)}, {vr(vT)}, vcc
        """)
    if 'hb' in exp:
        a(f"v_mov_b32 {vr(vT)}, 0\nds_write_b32 {vr(vCA)}, {vr(vT)}\ns_waitcnt lgkmcnt(0)\ns_mov_b32 s55, 4\nv_mov_b32 {vr(vOne)}, 1")
    a(f"""
    s_barrier
    ds_read_b128 {vr(KA,4)}, {vr(aK1)}
    ds_read_b32 {vr(KB)}, {vr(aK2)}
    ds_read_b128 {vr(VA[0],4)}, {vr(aV)}
    ds_read_b128 {vr(VB[0],4)}, {vr(aV)} offset:{VJ}
    s_waitcnt lgkmcnt(0)
    {MF} {vr(Sb[0],16)}, {vr(KA,4)}, {vr(Q1[0],4)}, 0
    {MF} {vr(Sb[0],16)}, {vr(KB,4)}, {vr(Q2[0],4)}, {vr(Sb[0],16)}
    s_mov_b32 s16, 0
    s_nop 15
    """)
    a(f"v_add_u32 {vr(lV)}, s41, {vr(lV)}")
    if 'prio' in exp: a("s_setprio 3")
    if stamp: stamp_mark(a, 0)
    a(f"{L_stage}:")
    def E(S_, g):
        b = S_ + 4*g; p = P + 2*g
        a(f"""
        v_exp_f32 {vr(b)}, {vr(b)}
        v_exp_f32 {vr(b+1)}, {vr(b+1)}
        v_exp_f32 {vr(b+2)}, {vr(b+2)}
        v_exp_f32 {vr(b+3)}, {vr(b+3)}
        v_cvt_pk_bf16_f32 {vr(p)}, {vr(b)}, {vr(b+1)}
        v_cvt_pk_bf16_f32 {vr(p+1)}, {vr(b+2)}, {vr(b+3)}
        """)
    SA, SB = Sb; OA, OB = O
    spread = 'burst' not in exp
    if spread:
        a("s_cmp_lt_u32 s16, 5\ns_mov_b32 m0, s18")
    for tt in range(4):
        cur = tt & 1; nxt = cur ^ 1
        if 'prio' in exp and tt > 0: a(f"s_setprio {3-tt}")
        a(f"{MF} {vr(SB,16)}, {vr(KA,4)}, {vr(Q1[1],4)}, 0")
        if spread and tt < 3 and 'nobar' not in exp:
            Ls = a.label("skipdma")
            a(f"s_cbranch_scc0 {Ls}")
            if tt == 0:
                a(f"""
                s_mov_b64 exec, {hex((1<<NL3)-1)}
                buffer_load_dwordx4 {vr(vL16)}, s[8:11], s17 offen offset:2048 lds
                s_mov_b64 exec, -1
                """)
            else:
                a(f"buffer_load_dwordx4 {vr(vL16)}, s[8:11], s17 offen offset:{(tt-1)*1024} lds")
            a(f"{Ls}:")
        E(SA, 0)
        hb = 'hb' in exp
        a(f"{MF} {vr(SB,16)}, {vr(KB,4)}, {vr(Q2[1],4)}, {vr(SB,16)}")
        if hb and tt == 3: a(f"ds_read_b32 {vr(vPoll)}, {vr(vCA)}")
        E(SA, 1)
        a(f"{MF} {vr(OB,16)}, {vr(VB[nxt],4)}, {vr(P+4,4)}, {vr(OB,16)}")
        if tt == 3 and hb:
            Lok = a.label("hb_ok"); Lsp = a.label("hb_spin")
            a(f"""
            s_waitcnt lgkmcnt(0)
            v_readfirstlane_b32 s40, {vr(vPoll)}
            s_cmp_ge_u32 s40, s55
            s_cbranch_scc1 {Lok}
            {Lsp}:
            ds_read_b32 {vr(vPoll)}, {vr(vCA)}
            s_waitcnt lgkmcnt(0)
            v_readfirstlane_b32 s40, {vr(vPoll)}
            s_cmp_ge_u32 s40, s55
            s_cbranch_scc0 {Lsp}
            {Lok}:
            s_add_u32 s55, s55, 4
            s_add_u32 s17, s17, {4*T}
            s_add_u32 s18, s18, {SLOT}
            s_sub_u32 s40, s18, {4*SLOT}
            s_cmp_ge_u32 s18, {4*SLOT}
            s_cselect_b32 s18, s40, s18
            """)
        if tt == 3:
            if 'nobar' not in exp and not hb:
                if spread:
                    L6 = a.label("w6"); Lb = a.label("wb")
                    a(f"""
                    s_cmp_lt_u32 s16, 5
                    s_cbranch_scc1 {L6}
                    s_waitcnt vmcnt(0)
                    {L6}:
                    s_waitcnt vmcnt(6)
                    s_barrier
                    s_add_u32 s17, s17, {4*T}
                    s_add_u32 s18, s18, {SLOT}
                    s_sub_u32 s40, s18, {4*SLOT}
                    s_cmp_ge_u32 s18, {4*SLOT}
                    s_cselect_b32 s18, s40, s18
                    """)
                else:
                    a(f"""
                    s_cmp_ge_u32 s16, 6
                    s_cbranch_scc1 {L_nodma}
                    s_waitcnt vmcnt(3)
                    s_barrier
                    s_cmp_ge_u32 s16, 5
                    s_cbranch_scc1 {L_bar}
                    """)
                    dma_stage()
                    a(f"""
                    s_add_u32 s17, s17, {4*T}
                    s_add_u32 s18, s18, {SLOT}
                    s_sub_u32 s40, s18, {4*SLOT}
                    s_cmp_ge_u32 s18, {4*SLOT}
                    s_cselect_b32 s18, s40, s18
                    s_branch {L_bar}
                    {L_nodma}:
                    s_waitcnt vmcnt(0)
                    s_barrier
                    {L_bar}:
                    """)
            if 'prio' in exp: a("s_setprio 3")
            a(f"""
            s_add_u32 s20, s20, {SLOT}
            s_cmp_ge_u32 s20, {4*SLOT}
            s_cselect_b32 s20, 0, s20
            v_add_u32 {vr(aK1)}, s20, {vr(lK1)}
            v_add_u32 {vr(aK2)}, s20, {vr(lK2)}
            v_add_u32 {vr(aV)}, s20, {vr(lV)}
            """)
            off = 0
        else:
            off = (tt + 1) * T
        a(f"""
        ds_read_b128 {vr(KA,4)}, {vr(aK1)} offset:{off}
        ds_read_b32 {vr(KB)}, {vr(aK2)} offset:{off}
        ds_read_b128 {vr(VA[nxt],4)}, {vr(aV)} offset:{off}
        ds_read_b128 {vr(VB[nxt],4)}, {vr(aV)} offset:{off+VJ}
        """)
        E(SA, 2)
        a(f"{MF} {vr(OA,16)}, {vr(VA[cur],4)}, {vr(P,4)}, {vr(OA,16)}");            E(SA, 3)
        a("s_waitcnt lgkmcnt(0)")
        a(f"{MF} {vr(SA,16)}, {vr(KA,4)}, {vr(Q1[0],4)}, 0");                       E(SB, 0)
        a(f"{MF} {vr(SA,16)}, {vr(KB,4)}, {vr(Q2[0],4)}, {vr(SA,16)}")
        if hb and tt == 2:
            L6 = a.label("w6")
            a(f"""
            s_cmp_lt_u32 s16, 5
            s_cbranch_scc1 {L6}
            s_waitcnt vmcnt(0)
            {L6}:
            s_waitcnt vmcnt(6)
            s_mov_b64 exec, 1
            ds_add_u32 {vr(vCA)}, {vr(vOne)}
            s_mov_b64 exec, -1
            """)
        E(SB, 1)
        a(f"{MF} {vr(OA,16)}, {vr(VB[cur],4)}, {vr(P+4,4)}, {vr(OA,16)}");          E(SB, 2)
        a(f"{MF} {vr(OB,16)}, {vr(VA[cur],4)}, {vr(P,4)}, {vr(OB,16)}");            E(SB, 3)
    a(f"""
    s_add_u32 s16, s16, 1
    s_cmp_lt_u32 s16, 8
    s_cbranch_scc1 {L_stage}
    s_nop 1
    {MF} {vr(OB,16)}, {vr(VB[1],4)}, {vr(P+4,4)}, {vr(OB,16)}
    s_setprio 0
    s_nop 15
    s_nop 3
    """)
    if stamp: stamp_mark(a, 1)
    XB = 11 * 256
    L_hi = a.label("attn_hi"); L_x = a.label("attn_x")
    a(f"""
    s_barrier
    s_mul_i32 s40, s19, {2*XB}
    v_lshlrev_b32 {vr(vT)}, 2, {vr(vL)}
    v_add_u32 {vr(vT)}, s40, {vr(vT)}
    s_cmp_eq_u32 s23, 1
    s_cbranch_scc1 {L_hi}
    """)
    for i in range(11): a(f"ds_write_b32 {vr(vT)}, {vr(OB+i)} offset:{XB + i*256}")
    a(f"s_waitcnt lgkmcnt(0)\ns_barrier")
    for i in range(11): a(f"ds_read_b32 {vr(SA+i)}, {vr(vT)} offset:{i*256}")
    a("s_waitcnt lgkmcnt(0)")
    for i in range(11): a(f"v_add_f32 {vr(OA+i)}, {vr(OA+i)}, {vr(SA+i)}")
    a(f"s_branch {L_x}\n{L_hi}:")
    for i in range(11): a(f"ds_write_b32 {vr(vT)}, {vr(OA+i)} offset:{i*256}")
    a(f"s_waitcnt lgkmcnt(0)\ns_barrier")
    for i in range(11): a(f"ds_read_b32 {vr(SA+i)}, {vr(vT)} offset:{XB + i*256}")
    a("s_waitcnt lgkmcnt(0)")
    for i in range(11): a(f"v_add_f32 {vr(OA+i)}, {vr(OB+i)}, {vr(SA+i)}")
    for i in range(4): a(f"v_mov_b32 {vr(Q1[0]+i)}, {vr(Q1[1]+i)}")
    a(f"v_mov_b32 {vr(Q2[0])}, {vr(Q2[1])}")
    a(f"s_add_u32 s21, s21, 1\n{L_x}:")
    a(f"""
    v_mov_b32 {vr(vT)}, {vr(OA+10)}
    v_mov_b32 {vr(vT2)}, {vr(OA+10)}
    s_nop 1
    v_permlane32_swap_b32 {vr(vT)}, {vr(vT2)}
    s_nop 1
    v_mov_b32 {vr(vT2)}, 0x21800000              ; 2^-60
    v_cmp_nge_f32 vcc, {vr(vT)}, {vr(vT2)}
    s_nop 1
    s_cbranch_vccnz {L_fall}
    {L_store}:
    v_rcp_f32 {vr(vT)}, {vr(vT)}
    s_nop 0
    """)
    for i in range(10): a(f"v_mul_f32 {vr(OA+i)}, {vr(OA+i)}, {vr(vT)}")
    a(f"""
    v_cvt_pk_bf16_f32 {vr(P)}, {vr(OA)}, {vr(OA+1)}
    v_cvt_pk_bf16_f32 {vr(P+1)}, {vr(OA+2)}, {vr(OA+3)}
    v_cvt_pk_bf16_f32 {vr(P+2)}, {vr(OA+4)}, {vr(OA+5)}
    v_cvt_pk_bf16_f32 {vr(P+3)}, {vr(OA+6)}, {vr(OA+7)}
    v_cvt_pk_bf16_f32 {vr(P+4)}, {vr(OA+8)}, {vr(OA+9)}
    v_and_b32 {vr(vT)}, 31, {vr(vL)}
    v_lshrrev_b32 {vr(vT2)}, 2, {vr(vT)}
    v_and_b32 {vr(vT2)}, 3, {vr(vT2)}                 ; g
    v_lshlrev_b32 {vr(vT)}, 6, {vr(vT)}               ; (l&31)*64
    s_lshr_b32 s40, s21, 2
    s_mul_i32 s40, s40, {18*8192}
    s_and_b32 s41, s21, 3
    s_lshl_b32 s41, s41, 11
    s_add_u32 s40, s40, s41
    s_add_u32 s40, s40, {WS_OP}
    v_lshrrev_b32 {vr(vT3)}, 5, {vr(vL)}
    s_and_b32 s41, s12, 1
    s_lshl_b32 s41, s41, 1
    v_add_u32 {vr(vT3)}, s41, {vr(vT3)}
    v_xor_b32 {vr(vT3)}, {vr(vT3)}, {vr(vT2)}
    v_lshlrev_b32 {vr(vT3)}, 4, {vr(vT3)}
    v_add_u32 {vr(vT3)}, {vr(vT3)}, {vr(vT)}
    s_lshr_b32 s41, s12, 1
    s_lshl_b32 s41, s41, 13
    s_add_u32 s41, s41, s40
    buffer_store_dwordx4 {vr(P,4)}, {vr(vT3)}, s[8:11], s41 offen
    s_and_b32 s41, s12, 15
    s_lshr_b32 s41, s41, 2
    v_xor_b32 {vr(vT2)}, s41, {vr(vT2)}
    v_lshlrev_b32 {vr(vT2)}, 4, {vr(vT2)}
    v_add_u32 {vr(vT2)}, {vr(vT2)}, {vr(vT)}
    s_lshr_b32 s41, s12, 4
    s_add_u32 s41, s41, 16
    s_lshl_b32 s41, s41, 13
    s_add_u32 s41, s41, s40
    s_and_b32 s42, s12, 3
    s_lshl_b32 s42, s42, 2
    s_add_u32 s41, s41, s42
    s_mov_b32 exec_hi, 0
    buffer_store_dword {vr(P+4)}, {vr(vT2)}, s[8:11], s41 offen
    s_mov_b64 exec, -1
    """)
    if stamp:
        a("s_waitcnt vmcnt(0)")
        stamp_end(a, 104)
    a("s_endpgm")
    L_p1 = a.label("fb_p1"); L_p2 = a.label("fb_p2")
    MX = aK1
    a(f"""
    {L_fall}:
    v_mov_b32 {vr(Q2[0]+1)}, 0
    v_mov_b32 {vr(MX)}, 0xff800000
    v_and_b32 {vr(vT)}, 31, {vr(vL)}
    v_lshlrev_b32 {vr(lK2)}, 2, {vr(vT)}
    s_mul_i32 s41, s23, {4*T}
    v_subrev_u32 {vr(lV)}, s41, {vr(lV)}
    s_mov_b32 s40, s15
    s_mov_b32 s16, 0
    {L_p1}:
    buffer_load_dwordx4 {vr(KA,4)}, {vr(vL16)}, s[8:11], s40 offen
    buffer_load_dword {vr(KB)}, {vr(lK2)}, s[8:11], s40 offen offset:1024
    s_waitcnt vmcnt(0)
    {MF} {vr(SA,16)}, {vr(KA,4)}, {vr(Q1[0],4)}, 0
    {MF} {vr(SA,16)}, {vr(KB,4)}, {vr(Q2[0],4)}, {vr(SA,16)}
    s_nop 15
    s_nop 3
    """)
    for i in range(0, 16, 2): a(f"v_max3_f32 {vr(MX)}, {vr(MX)}, {vr(SA+i)}, {vr(SA+i+1)}")
    a(f"""
    s_add_u32 s40, s40, {T}
    s_add_u32 s16, s16, 1
    s_cmp_lt_u32 s16, 64
    s_cbranch_scc1 {L_p1}
    v_mov_b32 {vr(vT)}, {vr(MX)}
    s_nop 1
    v_permlane32_swap_b32 {vr(MX)}, {vr(vT)}
    s_nop 1
    v_max_f32 {vr(MX)}, {vr(MX)}, {vr(vT)}
    """)
    for i in range(16): a(f"v_mov_b32 {vr(OA+i)}, 0")
    a(f"""
    s_mov_b32 s40, s15
    s_mov_b32 s16, 0
    {L_p2}:
    buffer_load_dwordx4 {vr(KA,4)}, {vr(vL16)}, s[8:11], s40 offen
    buffer_load_dword {vr(KB)}, {vr(lK2)}, s[8:11], s40 offen offset:1024
    buffer_load_dwordx4 {vr(VA[0],4)}, {vr(lV)}, s[8:11], s40 offen
    buffer_load_dwordx4 {vr(VB[0],4)}, {vr(lV)}, s[8:11], s40 offen offset:{VJ}
    s_waitcnt vmcnt(0)
    {MF} {vr(SA,16)}, {vr(KA,4)}, {vr(Q1[0],4)}, 0
    {MF} {vr(SA,16)}, {vr(KB,4)}, {vr(Q2[0],4)}, {vr(SA,16)}
    s_nop 15
    s_nop 3
    """)
    for i in range(16): a(f"v_sub_f32 {vr(SA+i)}, {vr(SA+i)}, {vr(MX)}")
    for i in range(16): a(f"v_exp_f32 {vr(SA+i)}, {vr(SA+i)}")
    a("s_nop 0")
    for i in range(8): a(f"v_cvt_pk_bf16_f32 {vr(P+i)}, {vr(SA+2*i)}, {vr(SA+2*i+1)}")
    a(f"""
    s_nop 1
    {MF} {vr(OA,16)}, {vr(VA[0],4)}, {vr(P,4)}, {vr(OA,16)}
    {MF} {vr(OA,16)}, {vr(VB[0],4)}, {vr(P+4,4)}, {vr(OA,16)}
    s_add_u32 s40, s40, {T}
    s_add_u32 s16, s16, 1
    s_cmp_lt_u32 s16, 64
    s_cbranch_scc1 {L_p2}
    s_nop 15
    s_nop 3
    v_mov_b32 {vr(vT)}, {vr(OA+10)}
    v_mov_b32 {vr(vT2)}, {vr(OA+10)}
    s_nop 1
    v_permlane32_swap_b32 {vr(vT)}, {vr(vT2)}
    s_nop 1
    s_branch {L_store}
    """)
    return nv
```

```python
from asmlib import *
from layout import *
import math, struct

XS = 16384
WSZ = 18432
STG = XS + WSZ
NS = 4; NSTG = 9
K1_LDS = NS * STG
QSCALE = (18 ** -0.5) * math.log2(math.e)
def f2u(x): return struct.unpack("<I", struct.pack("<f", x))[0]

def gen_qkv(a, stamp=False):
    R = Regs(start=1, limit=256)
    vL = R.alloc("lane"); vT = R.alloc("t0"); vT2 = R.alloc("t1"); vT3 = R.alloc("t2"); vT4 = R.alloc("t3")
    MF = "v_mfma_f32_16x16x32_bf16"
    L_ld = a.label("k1_loader"); L_epi = a.label("k1_epi")
    if stamp: stamp_begin(a)
    a(f"""
    s_load_dwordx2 s[4:5], s[0:1], 72
    s_load_dwordx2 s[6:7], s[0:1], 80
    s_load_dwordx2 s[34:35], s[0:1], 112
    v_and_b32 {vr(vL)}, 63, v0
    v_lshrrev_b32 {vr(vT)}, 6, v0
    s_and_b32 s36, s2, 7              ; xcd
    v_readfirstlane_b32 s20, {vr(vT)}
    s_lshr_b32 s37, s2, 3             ; li 0..23
    s_lshr_b32 s21, s36, 1
    s_lshl_b32 s21, s21, 2
    s_and_b32 s38, s37, 3
    s_add_u32 s21, s21, s38
    s_and_b32 s22, s36, 1
    s_mul_i32 s22, s22, 6
    s_lshr_b32 s38, s37, 2
    s_add_u32 s22, s22, s38
    s_lshr_b32 s23, s22, 2            ; type
    s_lshl_b32 s47, s37, 3
    s_add_u32 s47, s47, s20
    s_lshl_b32 s48, s47, 6
    v_add_u32 {vr(vT)}, s48, {vr(vL)}              ; idx 0..12287
    v_mul_u32_u24 {vr(vT2)}, 4682, {vr(vT)}
    v_lshrrev_b32 {vr(vT2)}, 16, {vr(vT2)}
    v_mul_u32_u24 {vr(vT3)}, 14, {vr(vT2)}
    v_sub_u32 {vr(vT3)}, {vr(vT)}, {vr(vT3)}
    v_mul_u32_u24 {vr(vT2)}, 3456, {vr(vT2)}
    v_lshlrev_b32 {vr(vT3)}, 7, {vr(vT3)}
    v_add_u32 {vr(vT4)}, {vr(vT2)}, {vr(vT3)}
    v_subrev_u32 {vr(vT)}, 7680, {vr(vT)}
    v_mul_u32_u24 {vr(vT2)}, 7282, {vr(vT)}
    v_lshrrev_b32 {vr(vT2)}, 16, {vr(vT2)}
    v_mul_u32_u24 {vr(vT3)}, 9, {vr(vT2)}
    v_sub_u32 {vr(vT3)}, {vr(vT)}, {vr(vT3)}
    v_mul_u32_u24 {vr(vT2)}, 1152, {vr(vT2)}
    v_lshlrev_b32 {vr(vT3)}, 7, {vr(vT3)}
    v_add_u32 {vr(vT3)}, {vr(vT2)}, {vr(vT3)}
    s_and_b32 s48, s36, 1
    s_mul_i32 s48, s48, 1728
    s_lshr_b32 s49, s36, 1
    s_mul_i32 s49, s49, {512*1152}
    s_waitcnt lgkmcnt(0)
    s_mov_b32 s8, s4
    s_and_b32 s9, s5, 0xffff
    s_mov_b32 s10, {2048*1152}
    s_mov_b32 s11, 0x20000
    s_mov_b32 s12, s6
    s_and_b32 s13, s7, 0xffff
    s_mov_b32 s14, {576*3456}
    s_mov_b32 s15, 0x20000
    s_cmp_lt_u32 s47, 126
    s_cbranch_scc0 {L_ld}_pw
    buffer_load_dword v230, {vr(vT4)}, s[12:15], s48 offen
    {L_ld}_pw:
    s_cmp_ge_u32 s47, 120
    s_cbranch_scc0 {L_ld}_px
    buffer_load_dword v231, {vr(vT3)}, s[8:11], s49 offen
    {L_ld}_px:
    s_cmp_ge_u32 s20, 4
    s_cbranch_scc1 {L_ld}
    """)
    def copy_offsets(CO):
        Lv2 = a.label("co_v"); Le2 = a.label("co_e")
        a(f"s_cmp_eq_u32 s23, 2\ns_cbranch_scc1 {Lv2}\ns_cmp_eq_u32 s23, 0\ns_mov_b32 s38, {TILE_KV}\ns_cselect_b32 s38, {TILE_Q}, s38")
        for u in range(5):
            a(f"""
            v_add_u32 {vr(vT)}, {64*u}, {vr(vL)}
            v_mul_u32_u24 {vr(vT2)}, 911, {vr(vT)}
            v_lshrrev_b32 {vr(vT2)}, 16, {vr(vT2)}        ; idx/72
            v_mul_u32_u24 {vr(vT3)}, 72, {vr(vT2)}
            v_sub_u32 {vr(vT3)}, {vr(vT)}, {vr(vT3)}
            v_lshlrev_b32 {vr(vT3)}, 4, {vr(vT3)}
            v_mul_lo_u32 {vr(vT2)}, {vr(vT2)}, s38
            v_add_u32 {vr(CO[u])}, {vr(vT2)}, {vr(vT3)}
            """)
        a(f"s_branch {Le2}\n{Lv2}:")
        for u in range(5):
            a(f"""
            v_add_u32 {vr(vT)}, {64*u}, {vr(vL)}
            v_mul_u32_u24 {vr(vT2)}, 820, {vr(vT)}
            v_lshrrev_b32 {vr(vT2)}, 16, {vr(vT2)}        ; idx/80
            v_mul_u32_u24 {vr(vT3)}, 80, {vr(vT2)}
            v_sub_u32 {vr(vT3)}, {vr(vT)}, {vr(vT3)}
            v_lshlrev_b32 {vr(vT3)}, 4, {vr(vT3)}
            v_mul_u32_u24 {vr(vT2)}, {TILE_KV}, {vr(vT2)}
            v_add_u32 {vr(CO[u])}, {vr(vT2)}, {vr(vT3)}
            v_add_u32 {vr(CO[u])}, 1152, {vr(CO[u])}
            """)
        a(f"{Le2}:")
    lX = [R.alloc("lX0"), R.alloc("lX1")]; aX = [R.alloc("aX0"), R.alloc("aX1")]
    lW = [R.alloc("lWa"), R.alloc("lWb")]; aW = [R.alloc("aWa"), R.alloc("aWb")]
    XF = [[R.alloc(f"XF{ks}{rt}", 4) for rt in range(2)] for ks in range(2)]
    WF = [[R.alloc(f"WF{ks}{ct}", 4) for ct in range(9)] for ks in range(2)]
    ACC = [[R.alloc(f"ACC{rt}{ct}", 4) for ct in range(9)] for rt in range(2)]
    EA = [[R.alloc(f"EA{ct}{u}") for u in range(2)] for ct in range(9)]
    ED = [[R.alloc(f"ED{ct}{u}") for u in range(2)] for ct in range(9)]
    A16 = R.alloc("A16"); A4 = R.alloc("A4"); SH = R.alloc("SH", 2); vG = R.alloc("vG")
    COc = [R.alloc(f"COc{u}") for u in range(5)]
    a(f"""
    v_and_b32 {vr(vT)}, 15, {vr(vL)}              ; r16
    v_lshrrev_b32 {vr(vG)}, 4, {vr(vL)}           ; g
    v_lshrrev_b32 {vr(vT3)}, 1, {vr(vT)}          ; f
    v_xor_b32 {vr(vT3)}, {vr(vT3)}, {vr(vG)}       ; phys(ks=0)
    s_lshl_b32 s38, s20, 5                        ; 32*w
    v_add_u32 {vr(vT4)}, s38, {vr(vT)}
    v_lshlrev_b32 {vr(vT4)}, 7, {vr(vT4)}
    v_lshlrev_b32 {vr(lX[0])}, 4, {vr(vT3)}
    v_add_u32 {vr(lX[0])}, {vr(lX[0])}, {vr(vT4)}
    v_xor_b32 {vr(lX[1])}, 64, {vr(lX[0])}
    v_lshrrev_b32 {vr(vT3)}, 2, {vr(vT)}          ; r
    v_lshlrev_b32 {vr(vT4)}, 3, {vr(vG)}
    v_add_u32 {vr(vT3)}, {vr(vT3)}, {vr(vT4)}
    v_mul_u32_u24 {vr(vT3)}, 288, {vr(vT3)}
    v_and_b32 {vr(vT4)}, 3, {vr(vL)}
    v_lshlrev_b32 {vr(vT4)}, 3, {vr(vT4)}
    v_add_u32 {vr(vT3)}, {vr(vT3)}, {vr(vT4)}
    v_add_u32 {vr(vT3)}, {XS}, {vr(vT3)}
    v_and_b32 {vr(vT4)}, 1, {vr(vG)}
    v_lshlrev_b32 {vr(vT2)}, 7, {vr(vT4)}
    v_add_u32 {vr(lW[0])}, {vr(vT3)}, {vr(vT2)}
    v_mul_u32_u24 {vr(vT2)}, 160, {vr(vT4)}
    v_sub_u32 {vr(lW[1])}, {vr(vT3)}, {vr(vT2)}
    v_mov_b32 {vr(aX[0])}, {vr(lX[0])}
    v_mov_b32 {vr(aX[1])}, {vr(lX[1])}
    v_mov_b32 {vr(aW[0])}, {vr(lW[0])}
    v_mov_b32 {vr(aW[1])}, {vr(lW[1])}
    """)
    for rt in range(2):
        for ct in range(9):
            for i in range(4): a(f"v_mov_b32 {vr(ACC[rt][ct]+i)}, 0")
    L_ev = a.label("k1_ev"); L_ed = a.label("k1_ed")
    a(f"""
    v_lshlrev_b32 {vr(A16)}, 4, {vr(vT)}
    v_lshlrev_b32 {vr(A4)}, 2, {vr(vT)}
    v_lshlrev_b32 {vr(vT2)}, 4, {vr(vG)}
    s_cmp_eq_u32 s23, 2
    s_cbranch_scc1 {L_ev}
    s_mul_i32 s39, s20, 1152
    v_add_u32 {vr(A16)}, s39, {vr(A16)}
    v_add_u32 {vr(A4)}, s39, {vr(A4)}
    """)
    for ct in range(9):
        for u in range(2):
            base = []; tail = []
            for g in range(4):
                col = 16*ct + 4*g + 2*u; sl = col // 18; d = col % 18
                base.append(sl*4608 + (1024 if d >= 16 else (d >> 3)*512 + (d & 7)*2)); tail.append(d >= 16)
            K = sum(b << (16*g) for g, b in enumerate(base))
            a(f"""
            s_mov_b32 s40, {hex(K & 0xffffffff)}
            s_mov_b32 s41, {hex(K >> 32)}
            v_lshrrev_b64 {vr(SH,2)}, {vr(vT2)}, s[40:41]
            v_and_b32 {vr(SH)}, 0xffff, {vr(SH)}
            """)
            if not any(tail):
                a(f"v_add_u32 {vr(EA[ct][u])}, {vr(SH)}, {vr(A16)}\nv_add_u32 {vr(ED[ct][u])}, 256, {vr(EA[ct][u])}")
            else:
                gt = tail.index(True); assert sum(tail) == 1
                a(f"""
                v_cmp_eq_u32 vcc, {gt}, {vr(vG)}
                v_add_u32 {vr(EA[ct][u])}, {vr(SH)}, {vr(A16)}
                v_add_u32 {vr(SH)}, {vr(SH)}, {vr(A4)}
                v_cndmask_b32 {vr(EA[ct][u])}, {vr(EA[ct][u])}, {vr(SH)}, vcc
                v_mov_b32 {vr(SH)}, 256
                v_mov_b32 {vr(SH+1)}, 64
                v_cndmask_b32 {vr(SH)}, {vr(SH)}, {vr(SH+1)}, vcc
                v_add_u32 {vr(ED[ct][u])}, {vr(EA[ct][u])}, {vr(SH)}
                """)
    a(f"s_branch {L_ed}\n{L_ev}:")
    a(f"""
    v_and_b32 {vr(vT3)}, 1, {vr(vG)}
    v_mul_u32_u24 {vr(vT3)}, {VHH}, {vr(vT3)}
    v_lshrrev_b32 {vr(vT2)}, 1, {vr(vG)}
    v_lshlrev_b32 {vr(vT2)}, 3, {vr(vT2)}
    v_add_u32 {vr(vT2)}, {vr(vT2)}, {vr(vT3)}
    s_mul_i32 s39, s20, {2*VJ}
    v_add_u32 {vr(vT2)}, s39, {vr(vT2)}
    """)
    for ct in range(9):
        a(f"""
        v_add_u32 {vr(vT3)}, {16*ct}, {vr(vT)}
        v_mul_u32_u24 {vr(vT4)}, 3641, {vr(vT3)}
        v_lshrrev_b32 {vr(vT4)}, 16, {vr(vT4)}           ; sl
        v_mul_u32_u24 {vr(SH)}, 18, {vr(vT4)}
        v_sub_u32 {vr(vT3)}, {vr(vT3)}, {vr(SH)}          ; d
        v_mul_u32_u24 {vr(vT4)}, {8*VJ}, {vr(vT4)}
        v_lshlrev_b32 {vr(vT3)}, 4, {vr(vT3)}
        v_add3_u32 {vr(EA[ct][0])}, {vr(vT4)}, {vr(vT3)}, {vr(vT2)}
        """)
    a(f"{L_ed}:")
    copy_offsets(COc)
    def reads(ks):
        s = []
        for rt in range(2): s.append(f"ds_read_b128 {vr(XF[ks][rt],4)}, {vr(aX[ks])} offset:{rt*2048}")
        for ct in range(9):
            for hf in range(2):
                s.append(f"ds_read_b64_tr_b16 {vr(WF[ks][ct]+2*hf,2)}, {vr(aW[0 if ct < 5 else 1])} offset:{ks*9216 + hf*1152 + ct*32}")
        return s
    def mfmas(ks, tv):
        s = []
        for ct in range(9):
            for rt in range(2):
                if tv: s.append(f"{MF} {vr(ACC[rt][ct],4)}, {vr(XF[ks][rt],4)}, {vr(WF[ks][ct],4)}, {vr(ACC[rt][ct],4)}")
                else:  s.append(f"{MF} {vr(ACC[rt][ct],4)}, {vr(WF[ks][ct],4)}, {vr(XF[ks][rt],4)}, {vr(ACC[rt][ct],4)}")
        return s
    def interleave(m, r, lead=0):
        out = []; r = list(r)
        for i, x in enumerate(m):
            out.append(x)
            if r: out.append(r.pop(0))
            if r and i < 2: out.append(r.pop(0))
        return out + r
    if stamp: stamp_mark(a, 0)
    Lv = a.label("k1_v")
    a(f"s_barrier")
    if stamp: stamp_mark(a, 1)
    a(f"s_mov_b32 s27, 0\ns_mov_b32 s29, 0\ns_cmp_eq_u32 s23, 2\ns_cbranch_scc1 {Lv}")
    for tv in range(2):
        if tv: a(f"{Lv}:")
        L = a.label("k1_loop"); Llast = a.label("k1_last")
        a("\n".join(reads(0)))
        a(f"{L}:")
        a("s_waitcnt lgkmcnt(0)")
        a("\n".join(interleave(mfmas(0, tv), reads(1))))
        a(f"""
        s_cmp_eq_u32 s27, {NSTG-1}
        s_cbranch_scc1 {Llast}
        s_add_u32 s29, s29, {STG}
        s_cmp_ge_u32 s29, {NS*STG}
        s_cselect_b32 s29, 0, s29
        v_add_u32 {vr(aX[0])}, s29, {vr(lX[0])}
        s_waitcnt lgkmcnt(0)
        v_add_u32 {vr(aW[0])}, s29, {vr(lW[0])}
        v_add_u32 {vr(aW[1])}, s29, {vr(lW[1])}
        s_barrier
        """)
        a("\n".join(interleave(mfmas(1, tv), reads(0))))
        a(f"""
        v_add_u32 {vr(aX[1])}, s29, {vr(lX[1])}
        s_add_u32 s27, s27, 1
        s_branch {L}
        {Llast}:
        s_waitcnt lgkmcnt(0)
        """)
        a("\n".join(mfmas(1, tv)))
        a(f"s_branch {L_epi}")
    a(f"{L_epi}:")
    if stamp: stamp_mark(a, 2)
    L_v = a.label("k1_epi_v"); L_co = a.label("k1_co"); L_co2 = a.label("k1_co2"); L_nk = a.label("k1_nok")
    a(f"""
    s_nop 7
    s_barrier
    s_cmp_eq_u32 s23, 2
    s_cbranch_scc1 {L_v}
    s_cmp_eq_u32 s23, 0
    s_cselect_b32 s38, {hex(f2u(QSCALE))}, 1.0
    """)
    for ct in range(9):
        for rt in range(2):
            b = ACC[rt][ct]
            a(f"""
            v_mul_f32 {vr(b)}, s38, {vr(b)}
            v_mul_f32 {vr(b+1)}, s38, {vr(b+1)}
            v_mul_f32 {vr(b+2)}, s38, {vr(b+2)}
            v_mul_f32 {vr(b+3)}, s38, {vr(b+3)}
            v_cvt_pk_bf16_f32 {vr(b)}, {vr(b)}, {vr(b+1)}
            v_cvt_pk_bf16_f32 {vr(b+2)}, {vr(b+2)}, {vr(b+3)}
            ds_write_b32 {vr((EA if rt == 0 else ED)[ct][0])}, {vr(b)}
            ds_write_b32 {vr((EA if rt == 0 else ED)[ct][1])}, {vr(b+2)}
            """)
    a(f"s_branch {L_co}\n{L_v}:")
    for ct in range(9):
        for rt in range(2):
            b = ACC[rt][ct]
            a(f"""
            v_cvt_pk_bf16_f32 {vr(b)}, {vr(b)}, {vr(b+1)}
            v_cvt_pk_bf16_f32 {vr(b+1)}, {vr(b+2)}, {vr(b+3)}
            ds_write_b64 {vr(EA[ct][0])}, {vr(b,2)} offset:{rt*VJ}
            """)
    a(f"s_branch {L_co}")
    a(f"{L_ld}:")
    R2 = Regs(start=R.names["t3"][0] + 1, limit=256)
    vXo = R2.alloc("xoff"); vWo = [R2.alloc(f"woff{u}") for u in range(5)]
    CO = [R2.alloc(f"CO{u}") for u in range(5)]
    CP = R2.alloc("CP", 20); KX = R2.alloc("KX", 12); PFD = R2.alloc("PFD", 4)
    a(f"""
    s_sub_u32 s24, s20, 4             ; lw
    v_lshrrev_b32 {vr(vT)}, 4, {vr(vL)}
    s_and_b32 s38, s24, 1
    s_lshl_b32 s38, s38, 2
    v_add_u32 {vr(vT)}, s38, {vr(vT)}
    v_and_b32 {vr(vT2)}, 7, {vr(vL)}
    v_xor_b32 {vr(vT)}, {vr(vT)}, {vr(vT2)}
    v_lshlrev_b32 {vr(vT)}, 4, {vr(vT)}
    v_lshrrev_b32 {vr(vT2)}, 3, {vr(vL)}
    v_mul_u32_u24 {vr(vT2)}, 1152, {vr(vT2)}
    v_add_u32 {vr(vXo)}, {vr(vT)}, {vr(vT2)}
    s_lshl_b32 s40, s21, 7
    s_lshl_b32 s38, s24, 3
    s_add_u32 s40, s40, s38
    s_mul_i32 s40, s40, 1152
    s_add_u32 s41, s40, {32*1152}
    s_add_u32 s42, s40, {64*1152}
    s_add_u32 s43, s40, {96*1152}
    s_lshl_b32 s38, s24, 4
    s_mul_i32 s44, s38, 3456
    s_mul_i32 s39, s22, 288
    s_add_u32 s44, s44, s39           ; W soffset
    """)
    for u in range(5):
        a(f"""
        v_add_u32 {vr(vT)}, {64*u}, {vr(vL)}
        v_mul_u32_u24 {vr(vT2)}, 3641, {vr(vT)}
        v_lshrrev_b32 {vr(vT2)}, 16, {vr(vT2)}
        v_mul_u32_u24 {vr(vT3)}, 18, {vr(vT2)}
        v_sub_u32 {vr(vT3)}, {vr(vT)}, {vr(vT3)}       ; pos
        v_and_b32 {vr(vT4)}, 8, {vr(vT2)}
        v_sub_u32 {vr(vT3)}, {vr(vT3)}, {vr(vT4)}
        v_add_u32 {vr(vT4)}, 18, {vr(vT3)}
        v_min_u32 {vr(vT3)}, {vr(vT3)}, {vr(vT4)}
        v_lshlrev_b32 {vr(vT3)}, 4, {vr(vT3)}
        v_mul_u32_u24 {vr(vT2)}, 3456, {vr(vT2)}
        v_add_u32 {vr(vWo[u])}, {vr(vT2)}, {vr(vT3)}
        """)
    a(f"""
    s_lshl_b32 s45, s24, 10
    s_mul_i32 s46, s24, 4608
    s_add_u32 s46, s46, {XS}
    s_mov_b32 s28, 0
    """)
    n = 9
    def dma():
        for u in range(4):
            a(f"""
            s_add_u32 m0, s28, s45
            s_add_u32 m0, m0, {u*4096}
            buffer_load_dwordx4 {vr(vXo)}, s[8:11], s{40+u} offen lds
            s_add_u32 s{40+u}, s{40+u}, 128
            """.replace("buffer_load", "s_nop 0\nbuffer_load"))
        a("s_add_u32 m0, s28, s46")
        for u in range(5):
            if u == 4: a("s_mov_b64 exec, 0xffffffff" .replace("s_mov_b64 exec, 0xffffffff", "s_mov_b32 exec_hi, 0"))
            else: a("s_nop 0")
            a(f"buffer_load_dwordx4 {vr(vWo[u])}, s[12:15], s44 offen lds")
            if u < 4: a("s_add_u32 m0, m0, 1024")
        a(f"""
        s_mov_b64 exec, -1
        s_add_u32 s44, s44, {64*3456}
        s_add_u32 s28, s28, {STG}
        s_cmp_ge_u32 s28, {NS*STG}
        s_cselect_b32 s28, 0, s28
        """)
    Lp = a.label("k1_pro"); Ll = a.label("k1_ll"); Lw = a.label("k1_lw"); Lt = a.label("k1_lt")
    dma(); dma()
    a(f"""
    s_waitcnt vmcnt({n})
    s_barrier
    """)
    dma()
    a(f"""
    s_mov_b32 s27, 0
    {Ll}:
    s_cmp_gt_u32 s27, {NSTG-3}
    s_cbranch_scc0 {Lw}
    s_waitcnt vmcnt(0)
    {Lw}:
    s_waitcnt vmcnt({n})
    s_barrier
    s_cmp_ge_u32 s27, {NSTG-3}        ; s+3 >= NSTG
    s_cbranch_scc1 {Lt}
    """)
    dma()
    a(f"""
    {Lt}:
    s_add_u32 s27, s27, 1
    s_cmp_lt_u32 s27, {NSTG-1}
    s_cbranch_scc1 {Ll}
    """)
    copy_offsets(CO)
    a(f"""
    s_barrier
    s_cmp_eq_u32 s23, 2
    s_cbranch_scc0 {L_co}
    v_lshlrev_b32 {vr(vT)}, 0, {vr(vL)}
    s_lshl_b32 s38, s24, 6
    v_add_u32 {vr(vT)}, s38, {vr(vT)}               ; 0..255
    v_lshrrev_b32 {vr(vT2)}, 1, {vr(vT)}
    v_mul_u32_u24 {vr(vT2)}, {VHH}, {vr(vT2)}
    v_and_b32 {vr(vT3)}, 1, {vr(vT)}
    v_lshlrev_b32 {vr(vT4)}, 4, {vr(vT3)}
    v_add_u32 {vr(vT2)}, {vr(vT2)}, {vr(vT4)}
    v_add_u32 {vr(vT2)}, {18*16}, {vr(vT2)}
    v_mov_b32 {vr(vT4)}, 0x3f803f80
    v_cmp_eq_u32 vcc, 0, {vr(vT3)}
    v_mov_b32 {vr(vT3)}, 0
    s_nop 0
    v_cndmask_b32 {vr(CP)}, {vr(vT3)}, {vr(vT4)}, vcc
    v_mov_b32 {vr(CP+1)}, {vr(CP)}
    v_mov_b32 {vr(CP+2)}, {vr(CP)}
    v_mov_b32 {vr(CP+3)}, {vr(CP)}
    ds_write_b128 {vr(vT2)}, {vr(CP,4)}
    {L_co}:
    """)
    Lmv = a.label("k1_mv")
    a(f"s_cmp_lt_u32 s20, 4\ns_cbranch_scc0 {Lmv}")
    for u in range(5): a(f"v_mov_b32 {vr(CO[u])}, {vr(COc[u])}")
    a(f"""
    {Lmv}:
    s_mov_b32 s16, s34
    s_and_b32 s17, s35, 0xffff
    s_mov_b32 s18, {WS_END}
    s_mov_b32 s19, 0x20000
    s_mov_b32 s50, s20                ; slice
    s_and_b32 s38, s22, 3
    s_lshl_b32 s38, s38, 3
    s_add_u32 s38, s38, s50           ; head
    s_lshl_b32 s39, s38, 6
    s_lshl_b32 s42, s21, 2
    s_add_u32 s39, s39, s42
    s_cmp_eq_u32 s23, 0
    s_mov_b32 s42, {TILE_KV}
    s_cselect_b32 s42, {TILE_Q}, s42
    s_mov_b32 s43, {WS_KV}
    s_cselect_b32 s43, {WS_Q}, s43
    s_mul_i32 s39, s39, s42
    s_add_u32 s39, s39, s43
    s_cmp_eq_u32 s23, 2
    s_mov_b32 s42, 4608
    s_cselect_b32 s42, {8*VJ}, s42
    s_mul_i32 s42, s42, s50
    v_lshlrev_b32 {vr(vT)}, 4, {vr(vL)}
    v_add_u32 {vr(vT)}, s42, {vr(vT)}
    s_waitcnt lgkmcnt(0)
    s_barrier
    """)
    for u in range(5): a(f"ds_read_b128 {vr(CP+4*u,4)}, {vr(vT)} offset:{u*1024}")
    for u in range(4):
        a(f"s_waitcnt lgkmcnt({4-u})\nbuffer_store_dwordx4 {vr(CP+4*u,4)}, {vr(CO[u])}, s[16:19], s39 offen")
    Lf = a.label("full5")
    a(f"""
    s_waitcnt lgkmcnt(0)
    s_cmp_eq_u32 s23, 2
    s_cbranch_scc1 {Lf}
    s_mov_b32 exec_hi, 0
    {Lf}:
    buffer_store_dwordx4 {vr(CP+16,4)}, {vr(CO[4])}, s[16:19], s39 offen
    s_mov_b64 exec, -1
    s_cmp_eq_u32 s23, 1
    s_cbranch_scc0 {L_nk}
    """)
    for rd in range(2):
        a(f"""
        v_lshrrev_b32 {vr(vT)}, 5, {vr(vL)}
        v_add_u32 {vr(vT)}, {2*rd}, {vr(vT)}
        v_mul_u32_u24 {vr(vT)}, 1152, {vr(vT)}
        v_add_u32 {vr(vT)}, s42, {vr(vT)}
        v_and_b32 {vr(vT2)}, 31, {vr(vL)}
        v_lshlrev_b32 {vr(vT3)}, 4, {vr(vT2)}
        v_add_u32 {vr(vT3)}, {vr(vT)}, {vr(vT3)}
        v_lshlrev_b32 {vr(vT2)}, 2, {vr(vT2)}
        v_add_u32 {vr(vT2)}, {vr(vT)}, {vr(vT2)}
        ds_read_b128 {vr(KX,4)}, {vr(vT3)}
        ds_read_b128 {vr(KX+4,4)}, {vr(vT3)} offset:512
        ds_read_b32 {vr(KX+8)}, {vr(vT2)} offset:1024
        s_waitcnt lgkmcnt(0)
        v_mov_b32 {vr(KX+10+rd)}, 0
        """)
        acc = KX+10+rd
        for r in range(9):
            a(f"v_dot2_f32_bf16 {vr(acc)}, {vr(KX+r)}, {vr(KX+r)}, {vr(acc)}")
        a("s_nop 2")
    m = KX+10
    a(f"v_max_f32 {vr(m)}, {vr(m)}, {vr(m+1)}")
    for ctrl in ("row_shr:1", "row_shr:2", "row_shr:4", "row_shr:8", "row_bcast:15 row_mask:0xa", "row_bcast:31 row_mask:0xc"):
        a(f"s_nop 1\nv_max_f32_dpp {vr(m)}, {vr(m)}, {vr(m)} {ctrl}")
    a(f"""
    s_nop 1
    v_readlane_b32 s43, {vr(m)}, 63
    s_lshl_b32 s38, s38, 6
    s_lshl_b32 s44, s21, 2
    s_add_u32 s38, s38, s44
    s_add_u32 s38, s38, {WS_KMAX}
    v_mov_b32 {vr(vT)}, s43
    v_mov_b32 {vr(vT2)}, 0
    s_mov_b64 exec, 1
    buffer_store_dword {vr(vT)}, {vr(vT2)}, s[16:19], s38 offen
    s_mov_b64 exec, -1
    {L_nk}:
    """)
    if stamp:
        a("s_waitcnt vmcnt(0)")
        stamp_end(a, 40)
    a("s_endpgm")
    return max(R.next, R2.next, 232)
```

```python
from asmlib import *
from layout import *
from nt2 import *

G2_NS = 3
G2_STG = 2*(8192 + 64*64)
G2_LDS = G2_NS * G2_STG

def gen_g2(a, mode, wg="s2", stamp=False, wait_h=False, second=None, prio=None, ns=G2_NS, nobegin=False):
    K = 1152 if mode == 'y' else 576
    NSTG = K // 64
    R = Regs(start=1, limit=128)
    nt = NT(64, ns, NSTG, SB=2)
    if stamp and not nobegin: stamp_begin(a)
    L_top = a.label("g2_top")
    if prio is not None: a(f"s_setprio {prio}")
    a(f"{L_top}:")
    a(f"""
    s_load_dwordx2 s[4:5], s[0:1], 0         ; A_x
    s_load_dwordx2 s[6:7], s[0:1], 64        ; Dskip
    s_load_dwordx2 s[8:9], s[0:1], 96        ; out
    s_load_dwordx4 s[60:63], s[0:1], 104
    s_and_b32 s26, {wg}, 15                   ; rt
    s_lshr_b32 s27, {wg}, 4                   ; cg
    """)
    vL, t = lane_consts(a, R)
    L_ld = a.label("g2_loader"); L_exit = a.label("g2_exit")
    def srd(d, lo, size):
        a(f"s_mov_b32 s{d}, s{lo}\ns_and_b32 s{d+1}, s{lo+1}, 0xffff\ns_mov_b32 s{d+2}, {size}\ns_mov_b32 s{d+3}, 0x20000")
    a("s_waitcnt lgkmcnt(0)")
    a(f"s_cmp_ge_u32 s20, 4\ns_cbranch_scc1 {L_ld}")
    ACC = [[R.alloc(f"ACC{j}", 16)] for j in range(2)]
    vO = R.alloc("vO"); vX = R.alloc("vX"); vD = R.alloc("vD")
    a(f"""
    s_lshr_b32 s28, s20, 1            ; th
    s_and_b32 s29, s20, 1             ; db
    """)
    srd(32, 8, OUT_BYTES)
    a(f"""
    s_lshl_b32 s30, s27, 6
    s_lshl_b32 s31, s29, 5
    s_add_u32 s30, s30, s31
    v_and_b32 {vr(t[0])}, 31, {vr(vL)}
    v_add_u32 {vr(t[0])}, s30, {vr(t[0])}          ; column
    v_lshrrev_b32 {vr(t[1])}, 5, {vr(vL)}
    v_lshlrev_b32 {vr(t[1])}, 2, {vr(t[1])}        ; 4hh
    s_lshl_b32 s31, s26, 7
    s_lshl_b32 s33, s28, 6
    """.replace("s_lshl_b32 s33, s28, 6", "s_lshl_b32 s44, s28, 6"))
    a(f"""
    s_add_u32 s31, s31, s44
    v_add_u32 {vr(t[1])}, s31, {vr(t[1])}          ; row (i=0,j=0)
    v_mul_u32_u24 {vr(vO)}, 4608, {vr(t[1])}
    v_lshlrev_b32 {vr(t[2])}, 2, {vr(t[0])}
    v_add_u32 {vr(vO)}, {vr(vO)}, {vr(t[2])}
    """)
    if mode == 'o':
        a(f"v_add_u32 {vr(vO)}, {576*4}, {vr(vO)}")
    XR = None
    if mode == 'y':
        srd(36, 4, 2048*1152); srd(40, 6, 1152)
        a(f"""
        v_mul_u32_u24 {vr(vX)}, 1152, {vr(t[1])}
        v_lshlrev_b32 {vr(t[2])}, 1, {vr(t[0])}
        v_add_u32 {vr(vX)}, {vr(vX)}, {vr(t[2])}
        buffer_load_ushort {vr(vD)}, {vr(t[2])}, s[40:43], 0 offen
        """)
    if mode == 'y':
        XR = R.alloc("XR", 32)
        for j in range(2):
            for i in range(16):
                row = 32*j + 8*(i//4) + i%4
                a(f"s_mov_b32 s45, {row*1152}\nbuffer_load_ushort {vr(XR+16*j+i)}, {vr(vX)}, s[36:39], s45 offen")
    for j in range(2):
        for i in range(16): a(f"v_mov_b32 {vr(ACC[j][0]+i)}, 0")
    a(f"s_lshl_b32 s28, s28, 12\ns_lshl_b32 s29, s29, 11")
    lag = compute_loop(a, nt, R, vL, t, 28, 29, [0], [(0,0),(1,0)], ACC, 4)
    if stamp: stamp_mark(a, 0)
    if mode == 'y':
        a(f"s_waitcnt vmcnt(0)\nv_lshlrev_b32 {vr(vD)}, 16, {vr(vD)}")
    for j in range(2):
        for i in range(16):
            row = 32*j + 8*(i//4) + i%4
            r = ACC[j][0]+i
            if mode == 'y':
                a(f"v_lshlrev_b32 {vr(XR+16*j+i)}, 16, {vr(XR+16*j+i)}\nv_fma_f32 {vr(r)}, {vr(XR+16*j+i)}, {vr(vD)}, {vr(r)}")
            a(f"s_mov_b32 s45, {row*4608}\nbuffer_store_dword {vr(r)}, {vr(vO)}, s[32:35], s45 offen")
    a(f"s_branch {L_exit}")
    nv = R.next
    a(f"{L_ld}:")
    vL16 = 8
    srd(28, 62, WS_END)
    baseA = WS_HP if mode == 'y' else WS_OP
    baseB = WS_CP if mode == 'y' else WS_WP
    if wait_h:
        Lp = a.label("g2_poll")
        a(f"""
        s_lshl_b32 s46, s26, 8
        s_add_u32 s46, s46, {WS_FLAG + 32*256}
        v_mov_b32 {vr(t[3])}, s46
        s_mov_b32 s48, 0
        {Lp}:
        global_load_dword {vr(t[2])}, {vr(t[3])}, s[62:63] sc1
        s_waitcnt vmcnt(0)
        v_readfirstlane_b32 s47, {vr(t[2])}
        s_cmp_ge_u32 s47, 36
        s_cbranch_scc1 {Lp}_ok
        s_sleep 8
        s_add_u32 s48, s48, 1
        s_cmp_lt_u32 s48, 200000
        s_cbranch_scc1 {Lp}
        {Lp}_ok:
        """)
        if stamp: stamp_mark(a, 1)
    a(f"""
    s_sub_u32 s21, s20, 4              ; lw
    v_lshlrev_b32 {vr(vL16)}, 4, {vr(vL)}
    s_lshl_b32 s46, s21, 10
    s_mul_i32 s44, s26, {2*NSTG*8192}
    s_add_u32 s44, s44, s46
    s_add_u32 s44, s44, {baseA}
    s_mul_i32 s45, s27, {2*NSTG*4096}
    s_add_u32 s45, s45, s46
    s_add_u32 s45, s45, {baseB}
    """)
    loader(a, nt, vL16, 28, 44, 45, L_exit, lag, prof=False)
    a(f"{L_exit}:")
    if second is not None:
        lim, add = second
        Lx = a.label("g2_fin")
        a(f"""
        s_cmp_lt_u32 {wg}, {lim}
        s_cbranch_scc0 {Lx}
        s_add_u32 {wg}, {wg}, {add}
        s_barrier
        s_branch {L_top}
        {Lx}:
        """)
    if stamp:
        a("s_waitcnt vmcnt(0)")
        stamp_end(a, 104)
    a("s_endpgm")
    return max(nv, R.next)
```

```python
S = 2048; D = 576; H = 32; DH = 18
TILE_Q = 1152
VROWS = 20
VHH = VROWS * 16
VJ = 2 * VHH
TILE_KV = 1152 + 2 * VJ
WS_Q = 0
WS_KV = WS_Q + H * 64 * TILE_Q
WS_KMAX = WS_KV + H * 64 * TILE_KV
WS_OP = WS_KMAX + 4096
WS_WP = WS_OP + 16 * 18 * 8192
WS_CP = WS_WP + 9 * 18 * 4096
WS_HP = WS_CP + 9 * 36 * 4096
WS_XP = WS_HP + 16 * 36 * 8192
WS_BP = WS_XP + 16 * 18 * 8192
WS_E = WS_BP + 9 * 18 * 8192
WS_FLAG = WS_E + 32 * 576 * 8
WS_END = WS_FLAG + 64 * 256
WS_O = WS_OP
WS_SIZE = 268435456
OUT_BYTES = S * 1152 * 4
ATTN_LDS = 4 * 8 * TILE_KV + 64
K2_LDS = 81920
```

```python
from asmlib import *
from layout import *
import math, struct
def f2u(x): return struct.unpack("<I", struct.pack("<f", x))[0]
MF = "v_mfma_f32_32x32x16_bf16"

class NT:
    def __init__(self, NB, NS, NSTG, SB=1):
        self.NB = NB; self.NS = NS; self.NSTG = NSTG; self.SB = SB
        self.BB = NB * 64
        self.AS = 8192 * SB
        self.STG = SB * (8192 + self.BB)
        self.LDS = NS * self.STG

def lane_consts(a, R):
    vL = R.alloc("lane"); t = [R.alloc(f"t{i}") for i in range(4)]
    a(f"""
    v_and_b32 {vr(vL)}, 63, v0
    v_lshrrev_b32 {vr(t[0])}, 6, v0
    s_nop 0
    v_readfirstlane_b32 s20, {vr(t[0])}
    """)
    return vL, t

def loader(a, nt, vL16, srd, sA, sB, L_exit, lag, prof=False):
    NS, NSTG, STG, BB, SB, AS = nt.NS, nt.NSTG, nt.STG, nt.BB, nt.SB, nt.AS
    nA = AS // 4096; nB = SB * BB // 4096; n = nA + nB
    def dma():
        for u in range(nA):
            a(f"""
            s_add_u32 m0, s22, {u*4096}
            s_add_u32 s23, s{sA}, {u*4096}
            buffer_load_dwordx4 {vr(vL16)}, s[{srd}:{srd+3}], s23 offen lds
            """)
        for u in range(nB):
            a(f"""
            s_add_u32 m0, s22, {AS + u*4096}
            s_add_u32 s23, s{sB}, {u*4096}
            buffer_load_dwordx4 {vr(vL16)}, s[{srd}:{srd+3}], s23 offen lds
            """)
        a(f"""
        s_add_u32 s{sA}, s{sA}, {AS}
        s_add_u32 s{sB}, s{sB}, {SB*BB}
        s_add_u32 s22, s22, {STG}
        s_sub_u32 s23, s22, {NS*STG}
        s_cmp_ge_u32 s22, {NS*STG}
        s_cselect_b32 s22, s23, s22
        """)
    AH = NS - lag
    assert AH >= 1
    Ll = a.label("ld_loop"); Lt = a.label("ld_tail"); Lw = a.label("ld_w")
    a("s_lshl_b32 s22, s21, 10")
    dma()
    if AH >= 2 or NS >= 2: dma()
    a(f"s_waitcnt vmcnt({n})\ns_barrier")
    for x in range(2, AH + 1): dma()
    first_younger = max(AH, 1) - 1
    a(f"""
    s_mov_b32 s24, 1
    {Ll}:
    """)
    if prof: a("s_memtime s[70:71]\ns_waitcnt lgkmcnt(0)")
    a(f"""
    s_cmp_ge_u32 s24, {NSTG - AH + 1}
    s_cbranch_scc0 {Lw}
    s_waitcnt vmcnt(0)
    {Lw}:
    s_waitcnt vmcnt({(AH-1)*n})
    """)
    if prof: a("s_memtime s[72:73]\ns_waitcnt lgkmcnt(0)")
    a("s_barrier")
    if prof: a("s_memtime s[74:75]\ns_waitcnt lgkmcnt(0)")
    a(f"""
    s_cmp_ge_u32 s24, {NSTG - AH}
    s_cbranch_scc1 {Lt}
    """)
    dma()
    a(f"{Lt}:")
    if prof: a("""s_memtime s[76:77]
    s_waitcnt lgkmcnt(0)
    s_sub_u32 s78, s72, s70
    s_add_u32 s94, s94, s78
    s_sub_u32 s78, s74, s72
    s_add_u32 s96, s96, s78
    s_sub_u32 s78, s76, s74
    s_add_u32 s97, s97, s78""")
    a(f"""
    s_add_u32 s24, s24, 1
    s_cmp_lt_u32 s24, {NSTG}
    s_cbranch_scc1 {Ll}
    s_branch {L_exit}
    """)

def frag_base(a, R, vL, t, sA_off, sB_off, AS):
    lA = R.alloc("lA"); lB = R.alloc("lB")
    a(f"""
    v_and_b32 {vr(t[0])}, 31, {vr(vL)}
    v_lshrrev_b32 {vr(t[1])}, 2, {vr(t[0])}
    v_and_b32 {vr(t[1])}, 3, {vr(t[1])}
    v_lshrrev_b32 {vr(t[2])}, 5, {vr(vL)}
    v_xor_b32 {vr(t[1])}, {vr(t[1])}, {vr(t[2])}
    v_lshlrev_b32 {vr(t[1])}, 4, {vr(t[1])}
    v_lshlrev_b32 {vr(t[0])}, 6, {vr(t[0])}
    v_add_u32 {vr(t[0])}, {vr(t[0])}, {vr(t[1])}
    v_add_u32 {vr(lA)}, s{sA_off}, {vr(t[0])}
    v_add_u32 {vr(lB)}, s{sB_off}, {vr(t[0])}
    v_add_u32 {vr(lB)}, {AS}, {vr(lB)}
    """)
    return lA, lB

def compute_loop(a, nt, R, vL, t, sA_off, sB_off, b_imm, tiles, ACC, nbuf):
    NS, NSTG, STG, SB, BB = nt.NS, nt.NSTG, nt.STG, nt.SB, nt.BB
    KS = 2 * SB
    nj = max(j for j, b in tiles) + 1; nb = len(b_imm); nr = nj + nb
    lA, lB = frag_base(a, R, vL, t, sA_off, sB_off, nt.AS)
    aA = [R.alloc("aA0"), t[2]]; aB = [R.alloc("aB0"), t[3]]
    AF = [[R.alloc(f"AF{s}{j}", 4) for j in range(nj)] for s in range(nbuf)]
    BF = [[R.alloc(f"BF{s}{b}", 4) for b in range(nb)] for s in range(nbuf)]
    D = nbuf - 1
    G = KS * nbuf // math.gcd(KS, nbuf)
    NK = KS * NSTG
    assert NK % G == 0 and NK // G >= 2
    def set_addr():
        return f"""
        v_add_u32 {vr(aA[0])}, s25, {vr(lA)}
        v_add_u32 {vr(aB[0])}, s25, {vr(lB)}
        v_xor_b32 {vr(aA[1])}, 32, {vr(aA[0])}
        v_xor_b32 {vr(aB[1])}, 32, {vr(aB[0])}
        s_add_u32 s25, s25, {STG}
        s_cmp_ge_u32 s25, {NS*STG}
        s_cselect_b32 s25, 0, s25
        """
    def reads(k):
        bf = k % nbuf; ks = k & 1; blk = (k % KS) >> 1
        s = ""
        for j in range(nj): s += f"ds_read_b128 {vr(AF[bf][j],4)}, {vr(aA[ks])} offset:{j*2048 + blk*8192}\n"
        for b in range(nb): s += f"ds_read_b128 {vr(BF[bf][b],4)}, {vr(aB[ks])} offset:{b_imm[b] + blk*BB}\n"
        return s
    def mfmas(k):
        bf = k % nbuf
        return "".join(f"{MF} {vr(ACC[j][b],16)}, {vr(AF[bf][j],4)}, {vr(BF[bf][b],4)}, {vr(ACC[j][b],16)}\n" for j, b in tiles)
    Ll = a.label("c_loop")
    a("s_mov_b32 s25, 0")
    for k in range(D):
        if k % KS == 0: a(set_addr()); a("s_barrier")
        a(reads(k))
    a(f"s_mov_b32 s24, 0\n{Ll}:")
    def body(last):
        for kk in range(G):
            kn = kk + D
            if (not last) or (kn < G):
                if kn % KS == 0: a(set_addr()); a("s_waitcnt lgkmcnt(0)\ns_barrier")
                a(reads(kn))
                a(f"s_waitcnt lgkmcnt({min(D*nr, 15)})")
            else:
                a(f"s_waitcnt lgkmcnt({min((G - 1 - kk)*nr, 15)})")
            a(mfmas(kk))
    body(False)
    a(f"""
    s_add_u32 s24, s24, 1
    s_cmp_lt_u32 s24, {NK//G - 1}
    s_cbranch_scc1 {Ll}
    """)
    body(True)
    a("s_nop 15\ns_nop 3")
    lag = 1
    return lag
```

```python
from asmlib import *
from layout import *
from a1 import lam_from_regs
from nt2 import f2u

def gen_prep(a, wg="s2", stamp=False):
    R = Regs(start=1, limit=128)
    vT = R.alloc("tid")
    t = [R.alloc(f"t{i}") for i in range(8)]
    def srd(d, lo, size):
        a(f"s_mov_b32 s{d}, s{lo}\ns_and_b32 s{d+1}, s{lo+1}, 0xffff\ns_mov_b32 s{d+2}, {size}\ns_mov_b32 s{d+3}, 0x20000")
    if stamp: stamp_begin(a)
    a(f"""
    s_load_dwordx4 s[4:7], s[0:1], 8
    s_load_dwordx4 s[8:11], s[0:1], 40
    s_load_dwordx2 s[12:13], s[0:1], 56       ; log_dt
    s_load_dwordx2 s[14:15], s[0:1], 88       ; wo
    s_load_dwordx2 s[16:17], s[0:1], 112      ; ws
    s_load_dwordx2 s[56:57], s[0:1], 0        ; A_x
    s_load_dwordx4 s[60:63], s[0:1], 24
    v_mov_b32 {vr(vT)}, v0
    s_waitcnt lgkmcnt(0)
    """)
    srd(20, 4, 1152); srd(24, 6, 1152); srd(28, 12, 1152); srd(32, 8, 576*1152); srd(36, 10, 576*1152); srd(40, 14, 576*1152); srd(44, 16, WS_END)
    Lz = a.label("prep_z")
    a(f"""
    s_cmp_eq_u32 {wg}, 0
    s_cbranch_scc0 {Lz}
    v_cmp_gt_u32 vcc, 64, {vr(vT)}
    s_and_saveexec_b64 s[52:53], vcc
    s_cbranch_execz {Lz}
    v_lshlrev_b32 {vr(t[0])}, 8, {vr(vT)}
    v_mov_b32 {vr(t[1])}, 0
    s_mov_b32 s54, {WS_FLAG}
    buffer_store_dword {vr(t[1])}, {vr(t[0])}, s[44:47], s54 offen
    {Lz}:
    s_mov_b64 exec, -1
    """)
    XB_ = R.alloc("XB", 20); BB_ = R.alloc("BB", 12); vSX = R.alloc("vSX"); vSB = R.alloc("vSB"); vD16 = R.alloc("vD16")
    a(f"""
    s_mov_b32 s64, s56
    s_and_b32 s65, s57, 0xffff
    s_mov_b32 s66, {2048*1152}
    s_mov_b32 s67, 0x20000
    v_readfirstlane_b32 s76, {vr(vT)}
    s_cmp_lt_u32 s76, 256
    s_cselect_b32 s68, s60, s62
    s_cselect_b32 s69, s61, s63
    s_and_b32 s69, s69, 0xffff
    s_mov_b32 s70, {576*1152}
    s_mov_b32 s71, 0x20000
    v_lshrrev_b32 {vr(t[0])}, 2, {vr(vT)}              ; r
    v_lshrrev_b32 {vr(t[1])}, 2, {vr(t[0])}
    v_xor_b32 {vr(t[1])}, {vr(t[1])}, {vr(vT)}
    v_and_b32 {vr(t[1])}, 3, {vr(t[1])}
    v_lshlrev_b32 {vr(t[1])}, 4, {vr(t[1])}            ; c*16
    v_and_b32 {vr(t[2])}, 63, {vr(t[0])}
    v_mul_u32_u24 {vr(t[2])}, 1152, {vr(t[2])}
    v_add_u32 {vr(vSB)}, {vr(t[2])}, {vr(t[1])}        ; B: (r&63)*1152 + c*16
    ; x row: 64*(r>>6) + 32*((m>>2)&1) + 16*((r>>5)&1) + 4*(m>>3) + (m&3), m = r&31
    v_and_b32 {vr(t[2])}, 64, {vr(t[0])}
    v_lshrrev_b32 {vr(t[3])}, 2, {vr(t[0])}
    v_and_b32 {vr(t[3])}, 1, {vr(t[3])}
    v_lshlrev_b32 {vr(t[3])}, 5, {vr(t[3])}
    v_add_u32 {vr(t[2])}, {vr(t[2])}, {vr(t[3])}
    v_lshrrev_b32 {vr(t[3])}, 5, {vr(t[0])}
    v_and_b32 {vr(t[3])}, 1, {vr(t[3])}
    v_lshlrev_b32 {vr(t[3])}, 4, {vr(t[3])}
    v_add_u32 {vr(t[2])}, {vr(t[2])}, {vr(t[3])}
    v_lshrrev_b32 {vr(t[3])}, 3, {vr(t[0])}
    v_and_b32 {vr(t[3])}, 3, {vr(t[3])}
    v_lshlrev_b32 {vr(t[3])}, 2, {vr(t[3])}
    v_add_u32 {vr(t[2])}, {vr(t[2])}, {vr(t[3])}
    v_and_b32 {vr(t[3])}, 3, {vr(t[0])}
    v_add_u32 {vr(t[2])}, {vr(t[2])}, {vr(t[3])}
    v_mul_u32_u24 {vr(t[2])}, 1152, {vr(t[2])}
    v_add_u32 {vr(vSX)}, {vr(t[2])}, {vr(t[1])}
    v_lshlrev_b32 {vr(vD16)}, 4, {vr(vT)}
    s_and_b32 s77, {wg}, 7             ; xcd
    s_lshr_b32 s78, {wg}, 3            ; j
    """)
    def xblk(u, store):
        a(f"""
        s_add_u32 s79, s78, {8*u}
        s_cmp_ge_u32 s79, 18
        s_cselect_b32 s80, 8, 0
        s_cselect_b32 s81, 18, 0
        s_add_u32 s80, s80, s77          ; rt
        s_sub_u32 s79, s79, s81          ; stage
        """)
        if not store:
            a(f"""
            s_mul_i32 s80, s80, {128*1152}
            s_lshl_b32 s79, s79, 6
            s_add_u32 s80, s80, s79
            buffer_load_dwordx4 {vr(XB_+4*u,4)}, {vr(vSX)}, s[64:67], s80 offen
            """)
        else:
            a(f"""
            s_mul_i32 s80, s80, 18
            s_add_u32 s80, s80, s79
            s_lshl_b32 s80, s80, 13
            s_add_u32 s80, s80, {WS_XP}
            buffer_store_dwordx4 {vr(XB_+4*u,4)}, {vr(vD16)}, s[44:47], s80 offen
            """)
    def bblk(u, store):
        a(f"""
        s_add_u32 s79, {wg}, {64*u}
        s_mul_i32 s80, s79, 3641
        s_lshr_b32 s80, s80, 16          ; pg
        s_mul_i32 s81, s80, 18
        s_sub_u32 s81, s79, s81          ; stage
        """)
        if not store:
            a(f"""
            s_mul_i32 s80, s80, {64*1152}
            s_lshl_b32 s81, s81, 6
            s_add_u32 s80, s80, s81
            buffer_load_dwordx4 {vr(BB_+4*u,4)}, {vr(vSB)}, s[68:71], s80 offen
            """)
        else:
            a(f"""
            s_lshl_b32 s79, s79, 13
            s_add_u32 s79, s79, {WS_BP}
            buffer_store_dwordx4 {vr(BB_+4*u,4)}, {vr(vD16)}, s[44:47], s79 offen
            """)
    def guarded(fn, u, store, cond):
        if cond is None: fn(u, store); return
        L = a.label("pk")
        a(f"{cond}\ns_cbranch_scc0 {L}")
        fn(u, store)
        a(f"{L}:")
    def pack(st):
        for u in range(5): guarded(xblk, u, st, "s_cmp_lt_u32 s78, 4" if u == 4 else None)
        for u in range(3): guarded(bblk, u, st, f"s_cmp_lt_u32 {wg}, {162-128}" if u == 2 else None)
    pack(False)
    if stamp: stamp_mark(a, 0)
    WB = R.alloc("WB", 8)
    a(f"""
    s_lshr_b32 s48, {wg}, 3            ; kb
    s_and_b32 s49, {wg}, 7             ; nb
    s_mul_i32 s50, s48, {72*1152}
    s_mul_i32 s51, s49, 144
    s_add_u32 s50, s50, s51
    """)
    LA = [R.alloc("LA0"), R.alloc("LA1")]
    for u in range(2):
        a(f"""
        v_add_u32 {vr(t[0])}, {512*u}, {vr(vT)}
        v_mul_u32_u24 {vr(t[1])}, 7282, {vr(t[0])}
        v_lshrrev_b32 {vr(t[1])}, 16, {vr(t[1])}
        v_mul_u32_u24 {vr(t[2])}, 9, {vr(t[1])}
        v_sub_u32 {vr(t[2])}, {vr(t[0])}, {vr(t[2])}      ; ch
        v_mul_u32_u24 {vr(t[3])}, 1152, {vr(t[1])}
        v_lshlrev_b32 {vr(t[4])}, 4, {vr(t[2])}
        v_add_u32 {vr(t[3])}, {vr(t[3])}, {vr(t[4])}
        v_mul_u32_u24 {vr(LA[u])}, 160, {vr(t[1])}
        v_add_u32 {vr(LA[u])}, {vr(LA[u])}, {vr(t[4])}
        buffer_load_dwordx4 {vr(WB+4*u,4)}, {vr(t[3])}, s[40:43], s50 offen
        """)
    Lskip = a.label("prep_skipc")
    LR = R.alloc("LR", 2); LI = R.alloc("LI", 2); LD = R.alloc("LD", 2)
    cr = R.alloc("cr", 2); ci = R.alloc("ci", 2); lb = R.alloc("lb", 2)
    CR = R.alloc("CR", 9); CI = R.alloc("CI", 9); OUT = R.alloc("OUT", 2)
    a(f"""
    v_lshlrev_b32 {vr(t[0])}, 2, {vr(vT)}
    buffer_load_dword {vr(t[1])}, {vr(t[0])}, s[20:23], 0 offen
    buffer_load_dword {vr(t[2])}, {vr(t[0])}, s[24:27], 0 offen
    buffer_load_dword {vr(t[3])}, {vr(t[0])}, s[28:31], 0 offen
    v_min_u32 {vr(t[7])}, 1148, {vr(t[0])}
    s_mul_i32 s54, {wg}, {9*1152}
    """)
    for r in range(9):
        a(f"""
        buffer_load_dword {vr(CR+r)}, {vr(t[7])}, s[32:35], s54 offen
        buffer_load_dword {vr(CI+r)}, {vr(t[7])}, s[36:39], s54 offen
        s_add_u32 s54, s54, 1152
        """)
    a("s_waitcnt vmcnt(21)")
    pack(True)
    a(f"""
    ds_write_b128 {vr(LA[0])}, {vr(WB,4)}
    v_cmp_gt_u32 vcc, {648-512}, {vr(vT)}
    s_and_saveexec_b64 s[52:53], vcc
    s_cbranch_execz {Lskip}_w
    ds_write_b128 {vr(LA[1])}, {vr(WB+4,4)}
    {Lskip}_w:
    s_mov_b64 exec, -1
    v_cmp_gt_u32 vcc, 288, {vr(vT)}
    s_and_saveexec_b64 s[52:53], vcc
    s_cbranch_execz {Lskip}
    """)
    a(f"""
    s_waitcnt vmcnt(6)
    v_lshlrev_b32 {vr(LR)}, 16, {vr(t[1])}
    v_and_b32 {vr(LR+1)}, 0xffff0000, {vr(t[1])}
    v_lshlrev_b32 {vr(LI)}, 16, {vr(t[2])}
    v_and_b32 {vr(LI+1)}, 0xffff0000, {vr(t[2])}
    v_lshlrev_b32 {vr(LD)}, 16, {vr(t[3])}
    v_and_b32 {vr(LD+1)}, 0xffff0000, {vr(t[3])}
    """)
    for e in range(2):
        lam_from_regs(a, LR+e, LI+e, LD+e, lb, lb+1, (t[4], t[5], t[6]), (cr+e, ci+e))
    CL = R.alloc("CL"); CC = R.alloc("CC")
    a(f"""
    v_lshrrev_b32 {vr(CL)}, 3, {vr(vT)}
    v_lshlrev_b32 {vr(CL)}, 12, {vr(CL)}            ; stage*4096
    v_and_b32 {vr(t[0])}, 1, {vr(vT)}
    v_lshlrev_b32 {vr(t[0])}, 3, {vr(t[0])}
    v_add_u32 {vr(CL)}, {vr(CL)}, {vr(t[0])}
    v_lshrrev_b32 {vr(CC)}, 1, {vr(vT)}
    v_and_b32 {vr(CC)}, 3, {vr(CC)}                 ; chunk
    s_mul_i32 s55, {wg}, 9                          ; d
    """)
    for r in range(9):
        for e in range(2):
            if e == 0: a(f"v_lshlrev_b32 {vr(t[1])}, 16, {vr(CR+r)}\nv_lshlrev_b32 {vr(t[2])}, 16, {vr(CI+r)}")
            else:      a(f"v_and_b32 {vr(t[1])}, 0xffff0000, {vr(CR+r)}\nv_and_b32 {vr(t[2])}, 0xffff0000, {vr(CI+r)}")
            a(f"""
            v_mul_f32 {vr(t[3])}, {vr(t[1])}, {vr(cr+e)}
            v_fma_f32 {vr(t[3])}, -{vr(t[2])}, {vr(ci+e)}, {vr(t[3])}
            v_mul_f32 {vr(t[4])}, {vr(t[1])}, {vr(ci+e)}
            v_fma_f32 {vr(t[4])}, {vr(t[2])}, {vr(cr+e)}, {vr(t[4])}
            v_mul_f32 {vr(t[3])}, 2.0, {vr(t[3])}
            v_mul_f32 {vr(t[4])}, -2.0, {vr(t[4])}
            v_cvt_pk_bf16_f32 {vr(OUT+e)}, {vr(t[3])}, {vr(t[4])}
            """)
        a(f"""
        s_lshr_b32 s54, s55, 6
        s_mul_i32 s54, s54, {36*4096}
        s_and_b32 s58, s55, 63
        s_lshl_b32 s59, s58, 6
        s_add_u32 s54, s54, s59
        s_add_u32 s54, s54, {WS_CP}
        s_lshr_b32 s58, s58, 2
        s_and_b32 s58, s58, 3
        v_xor_b32 {vr(t[0])}, s58, {vr(CC)}
        v_lshlrev_b32 {vr(t[0])}, 4, {vr(t[0])}
        v_add_u32 {vr(t[0])}, {vr(t[0])}, {vr(CL)}
        buffer_store_dwordx2 {vr(OUT,2)}, {vr(t[0])}, s[44:47], s54 offen
        s_add_u32 s55, s55, 1
        s_nop 0
        """)
    a(f"{Lskip}:\ns_mov_b64 exec, -1")
    if stamp: stamp_mark(a, 1)
    a(f"""
    s_waitcnt lgkmcnt(0)
    s_barrier
    """)
    G = R.alloc("G", 8); PK = R.alloc("PK", 4)
    for u in range(2):
        Ls = a.label("prep_o")
        a(f"""
        v_add_u32 {vr(t[0])}, {512*u}, {vr(vT)}
        v_cmp_gt_u32 vcc, 648, {vr(t[0])}
        s_and_saveexec_b64 s[52:53], vcc
        s_cbranch_execz {Ls}
        v_mul_u32_u24 {vr(t[1])}, 7282, {vr(t[0])}
        v_lshrrev_b32 {vr(t[1])}, 16, {vr(t[1])}          ; n
        v_mul_u32_u24 {vr(t[2])}, 9, {vr(t[1])}
        v_sub_u32 {vr(t[2])}, {vr(t[0])}, {vr(t[2])}      ; ch
        v_lshrrev_b32 {vr(t[3])}, 1, {vr(t[2])}
        v_mul_u32_u24 {vr(t[3])}, 18, {vr(t[3])}
        v_and_b32 {vr(t[4])}, 1, {vr(t[2])}
        v_lshlrev_b32 {vr(t[4])}, 2, {vr(t[4])}
        v_add_u32 {vr(t[3])}, {vr(t[3])}, {vr(t[4])}
        v_mul_u32_u24 {vr(t[3])}, 160, {vr(t[3])}
        v_lshlrev_b32 {vr(t[4])}, 1, {vr(t[1])}           ; n*2
        v_add_u32 {vr(t[3])}, {vr(t[3])}, {vr(t[4])}
        v_cmp_eq_u32 vcc, 8, {vr(t[2])}
        """)
        for e in range(8):
            main = (e if e < 4 else e + 4) * 160
            tail = (18*(e>>1) + 16 + (e&1)) * 160
            a(f"""
            v_add_u32 {vr(t[5])}, {main}, {vr(t[3])}
            v_add_u32 {vr(t[6])}, {tail}, {vr(t[4])}
            v_cndmask_b32 {vr(t[5])}, {vr(t[5])}, {vr(t[6])}, vcc
            ds_read_u16 {vr(G+e)}, {vr(t[5])}
            """)
        a("s_waitcnt lgkmcnt(0)")
        for e in range(4):
            a(f"v_lshlrev_b32 {vr(G+2*e+1)}, 16, {vr(G+2*e+1)}\nv_or_b32 {vr(PK+e)}, {vr(G+2*e)}, {vr(G+2*e+1)}")
        a(f"""
        s_mul_i32 s54, s49, 72
        v_add_u32 {vr(t[1])}, s54, {vr(t[1])}             ; n_g
        v_lshrrev_b32 {vr(t[5])}, 2, {vr(t[2])}
        s_lshl_b32 s54, s48, 1
        v_add_u32 {vr(t[5])}, s54, {vr(t[5])}
        s_lshr_b32 s54, s48, 2
        s_add_u32 s54, s54, 16
        v_mov_b32 {vr(t[6])}, s54
        v_cndmask_b32 {vr(t[5])}, {vr(t[5])}, {vr(t[6])}, vcc
        v_and_b32 {vr(t[3])}, 3, {vr(t[2])}
        s_and_b32 s54, s48, 3
        v_mov_b32 {vr(t[6])}, s54
        v_cndmask_b32 {vr(t[3])}, {vr(t[3])}, {vr(t[6])}, vcc      ; chunk
        v_lshrrev_b32 {vr(t[6])}, 6, {vr(t[1])}           ; cg
        v_mul_u32_u24 {vr(t[6])}, 18, {vr(t[6])}
        v_add_u32 {vr(t[5])}, {vr(t[5])}, {vr(t[6])}
        v_lshlrev_b32 {vr(t[5])}, 12, {vr(t[5])}
        v_and_b32 {vr(t[1])}, 63, {vr(t[1])}              ; r
        v_lshrrev_b32 {vr(t[6])}, 2, {vr(t[1])}
        v_and_b32 {vr(t[6])}, 3, {vr(t[6])}
        v_xor_b32 {vr(t[3])}, {vr(t[3])}, {vr(t[6])}
        v_lshlrev_b32 {vr(t[3])}, 4, {vr(t[3])}
        v_lshlrev_b32 {vr(t[1])}, 6, {vr(t[1])}
        v_add3_u32 {vr(t[1])}, {vr(t[1])}, {vr(t[3])}, {vr(t[5])}
        s_mov_b32 s54, {WS_WP}
        buffer_store_dwordx4 {vr(PK,4)}, {vr(t[1])}, s[44:47], s54 offen
        {Ls}:
        s_mov_b64 exec, -1
        """)
    if stamp:
        stamp_mark(a, 2)
        a("s_waitcnt vmcnt(0)")
        stamp_end(a, 104)
    a("s_endpgm")
    return max(R.next, 120)
```

```python
import sys
sys.path.insert(0, '../bench')
from asmlib import *
from layout import *
import k1, a1, k3, attn2, prep
import os
APRIO = int(os.environ.get('APRIO', '3'))
NAME = "concat_heads__ssm_conv_s5__mha_block__prompt"
def build(stamp=False, exp=('prio','hb')):
    a = Asm()
    hdr = open('cdna_kernels/' + NAME + '.s.ref').read().split("; Override launch")[0]
    launches = [("k1_kernel", 256, 512, k1.K1_LDS), ("k2_kernel", 400, 512, K2_LDS), ("k3_kernel", 288, 512, k3.G2_LDS)]
    a.raw(hdr.rstrip())
    for n, g, b, l in launches: a.raw(f"; @launch kernel={n} grid=({g},1,1) block=({b},1,1) lds={l}")
    a.raw('.amdgcn_target "amdgcn-amd-amdhsa--gfx950"\n.text')
    descs = []
    def begin(n): a.raw(f'.globl {n}\n.p2align 8\n.type {n},@function\n{n}:')
    begin("k1_kernel")
    a("s_cmp_ge_u32 s2, 256\ns_cbranch_scc1 L_k1_exit\ns_cmp_ge_u32 s2, 192\ns_cbranch_scc1 L_k1_prep")
    nv = k1.gen_qkv(a, stamp=stamp)
    a.raw("L_k1_prep:")
    a("s_sub_u32 s3, s2, 192")
    nv2 = prep.gen_prep(a, wg="s3", stamp=stamp)
    a.raw("L_k1_exit:\n  s_endpgm")
    descs.append(kernel_desc("k1_kernel", (max(nv,nv2)+7)//8*8))
    begin("k2_kernel")
    a("s_cmp_ge_u32 s2, 400\ns_cbranch_scc1 L_k2_exit\ns_cmp_ge_u32 s2, 256\ns_cbranch_scc1 L_k2_a")
    nv = attn2.gen_attn(a, stamp=stamp, exp=exp)
    a.raw("L_k2_a:")
    if stamp: stamp_begin(a)
    a("s_sub_u32 s3, s2, 256\ns_cmp_ge_u32 s3, 144\ns_cbranch_scc1 L_k2_exit")
    nv = a1.gen_a1(a, wg="s3", stamp=stamp, signal_h=False, prio=APRIO, nobegin=True)
    a.raw("L_k2_exit:\n  s_endpgm")
    descs.append(kernel_desc("k2_kernel", 128))
    begin("k3_kernel")
    a("""s_cmp_ge_u32 s2, 288
    s_cbranch_scc1 L_k3_exit
    s_cmp_lt_u32 s2, 112
    s_cbranch_scc1 L_k3_o1
    s_cmp_ge_u32 s2, 256
    s_cbranch_scc1 L_k3_o2
    s_sub_u32 s3, s2, 112""")
    nv = k3.gen_g2(a, 'y', wg="s3", stamp=stamp)
    a.raw("L_k3_o2:")
    a("s_sub_u32 s2, s2, 144")
    a.raw("L_k3_o1:")
    if stamp: a("s_mov_b32 s3, s2\ns_cmp_ge_u32 s3, 112\ns_cselect_b32 s2, 144, 0\ns_add_u32 s2, s2, s3")
    else: a("s_mov_b32 s3, s2")
    nv = k3.gen_g2(a, 'o', wg="s3", stamp=stamp)
    a.raw("L_k3_exit:\n  s_endpgm")
    descs.append(kernel_desc("k3_kernel", 128))
    a.raw('.section .rodata,"a"')
    for d in descs: a.raw(d)
    return a.text(), launches
if __name__ == "__main__":
    stamp = 'stamp' in sys.argv
    txt, launches = build(stamp)
    if stamp:
        import mkco, json
        mkco.build(txt, os.environ.get("OUT", "full_stamp.co"), 15)
        json.dump(launches, open("launches.json","w"))
    else:
        open('cdna_kernels/' + NAME + '.s', 'w').write(txt)
        import mkco, json
        mkco.build(txt, "full.co", 15)
        json.dump(launches, open("launches.json","w"))
    print("bytes", len(txt))
```

```python
from asmlib import *
from layout import *
from nt2 import *
from a1 import lambda_setup, csq, cmad

import os
NBUF = int(os.environ.get('A2BUF', '1'))
A2_SB = int(os.environ.get('A2SB', '1')); A2_NS = int(os.environ.get('A2NS', '3')); A2_NSTG = 18 // A2_SB
A2_XCH = 73728

def gen_a2(a, wg="s3", stamp=False, prio=None, signal_h=False, cont=None):
    R = Regs(start=1, limit=128)
    nt = NT(128, A2_NS, A2_NSTG, SB=A2_SB, NA=64)
    if prio is not None: a(f"s_setprio {prio}")
    L_top = a.label("a2_top"); L_ld = a.label("a2_loader"); L_exit = a.label("a2_exit"); L_ldx = a.label("a2_ldx")
    a(f"""
    s_load_dwordx4 s[8:11], s[0:1], 8
    s_load_dwordx2 s[16:17], s[0:1], 56      ; log_dt
    s_load_dwordx2 s[62:63], s[0:1], 112     ; ws
    s_and_b32 s4, {wg}, 7                     ; xcd
    s_lshr_b32 s5, {wg}, 3                    ; j 0..31
    s_mul_i32 s6, s5, 7282
    s_lshr_b32 s6, s6, 16                     ; j/9
    s_mul_i32 s7, s6, 9
    s_sub_u32 s27, s5, s7                     ; pg
    s_lshl_b32 s6, s6, 3
    s_add_u32 s26, s6, s4                     ; chunk c
    s_mov_b32 s18, 0                          ; round
    """)
    vL, t = lane_consts(a, R)
    def srd(d, lo, size):
        a(f"s_mov_b32 s{d}, s{lo}\ns_and_b32 s{d+1}, s{lo+1}, 0xffff\ns_mov_b32 s{d+2}, {size}\ns_mov_b32 s{d+3}, 0x20000")
    a("s_waitcnt lgkmcnt(0)")
    a(f"{L_top}:")
    a(f"s_cmp_ge_u32 s20, 4\ns_cbranch_scc1 {L_ld}")
    lr = R.alloc("lr"); li = R.alloc("li")
    RE = R.alloc("RE", 16); IM = R.alloc("IM", 16)
    ACC = [[RE, IM]]
    raw = R.alloc("raw", 3)
    vP = R.alloc("vP")
    srd(32, 8, 1152); srd(36, 10, 1152); srd(40, 16, 1152)
    a(f"""
    s_lshr_b32 s28, s20, 1            ; tq
    s_and_b32 s29, s20, 1             ; pb
    s_lshl_b32 s30, s27, 6
    s_lshl_b32 s31, s29, 5
    s_add_u32 s30, s30, s31
    v_and_b32 {vr(vP)}, 31, {vr(vL)}
    v_add_u32 {vr(vP)}, s30, {vr(vP)}              ; p
    v_lshlrev_b32 {vr(t[0])}, 1, {vr(vP)}
    buffer_load_ushort {vr(raw)}, {vr(t[0])}, s[32:35], 0 offen
    buffer_load_ushort {vr(raw+1)}, {vr(t[0])}, s[36:39], 0 offen
    buffer_load_ushort {vr(raw+2)}, {vr(t[0])}, s[40:43], 0 offen
    """)
    for i in range(16): a(f"v_mov_b32 {vr(RE+i)}, 0\nv_mov_b32 {vr(IM+i)}, 0")
    a(f"s_lshl_b32 s44, s28, 11\ns_lshl_b32 s45, s29, 11")
    mark = R.next
    lag = compute_loop(a, nt, R, vL, t, 44, 45, [0, 4096], [(0,0),(0,1)], ACC, NBUF)
    if stamp: stamp_mark(a, 0)
    R.next = mark
    tt0 = R.alloc("tt", 6, align=2); tt = [tt0 + i for i in range(6)]
    from a1 import lam_from_regs
    a(f"""
    s_waitcnt vmcnt(0)
    v_lshlrev_b32 {vr(raw)}, 16, {vr(raw)}
    v_lshlrev_b32 {vr(raw+1)}, 16, {vr(raw+1)}
    v_lshlrev_b32 {vr(raw+2)}, 16, {vr(raw+2)}
    """)
    lam_from_regs(a, raw, raw+1, raw+2, lr, li, (tt[0], tt[1], tt[2]))
    l16r = R.alloc("l16r"); l16i = R.alloc("l16i"); l32r = R.alloc("l32r"); l32i = R.alloc("l32i"); l64r = R.alloc("l64r"); l64i = R.alloc("l64i")
    csq(a, l16r, l16i, lr, li, tt[0])
    for _ in range(3): csq(a, l16r, l16i, l16r, l16i, tt[0])
    csq(a, l32r, l32i, l16r, l16i, tt[0])
    csq(a, l64r, l64i, l32r, l32i, tt[0])
    er = R.alloc("er"); ei = R.alloc("ei"); e2r = R.alloc("e2r"); e2i = R.alloc("e2i")
    W0 = R.alloc("W0", 2, align=2); Ew = R.alloc("Ew", 2, align=2)
    gr = er; gi = ei
    EL = R.alloc("EL", 62, align=4)
    a(f"v_mov_b32 {vr(er)}, {vr(RE)}\nv_mov_b32 {vr(ei)}, {vr(IM)}")
    cur = (er, ei); oth = (e2r, e2i)
    for i in range(1, 16):
        cmad(a, oth[0], oth[1], lr, li, cur[0], cur[1], RE+i, IM+i)
        cur, oth = oth, cur
    Er, Ei = cur; Fr, Fi = oth
    a(f"""
    v_mov_b32 {vr(Fr)}, {vr(Er)}
    v_mov_b32 {vr(Fi)}, {vr(Ei)}
    s_nop 1
    v_permlane32_swap_b32 {vr(Er)}, {vr(Fr)}
    v_permlane32_swap_b32 {vr(Ei)}, {vr(Fi)}
    s_nop 1
    """)
    cmad(a, Ew, Ew+1, l16r, l16i, Er, Ei, Fr, Fi)
    Lw1 = a.label("a2_w1"); Lw2 = a.label("a2_w2")
    a(f"""
    v_and_b32 {vr(tt[0])}, 31, {vr(vL)}
    v_lshlrev_b32 {vr(tt[0])}, 3, {vr(tt[0])}
    s_lshl_b32 s46, s29, 8
    s_add_u32 s46, s46, {A2_XCH}
    v_add_u32 {vr(tt[0])}, s46, {vr(tt[0])}
    s_cmp_eq_u32 s28, 0
    s_cbranch_scc0 {Lw1}
    ds_write_b64 {vr(tt[0])}, {vr(Ew,2)}
    s_waitcnt lgkmcnt(0)
    {Lw1}:
    s_barrier
    """)
    srd(32, 62, WS_END)
    a(f"""
    s_add_u32 s36, s62, {WS_E}
    s_addc_u32 s37, s63, 0
    s_and_b32 s37, s37, 0xffff
    s_mov_b32 s38, {32*576*8}
    s_mov_b32 s39, 0x20000
    s_mul_i32 s45, s26, 576
    v_add_u32 {vr(tt[2])}, s45, {vr(vP)}
    v_lshlrev_b32 {vr(tt[2])}, 3, {vr(tt[2])}     ; (c*576 + p)*8
    v_mov_b32 {vr(W0)}, 0
    v_mov_b32 {vr(W0+1)}, 0
    s_cmp_eq_u32 s28, 0
    s_cbranch_scc1 {Lw2}
    ds_read_b64 {vr(W0,2)}, {vr(tt[0])}
    s_waitcnt lgkmcnt(0)
    """)
    cmad(a, tt[4], tt[5], l32r, l32i, W0, W0+1, Ew, Ew+1)
    a(f"""
    s_mov_b32 exec_hi, 0
    buffer_store_dwordx2 {vr(tt[4],2)}, {vr(tt[2])}, s[36:39], 0 offen sc1
    s_mov_b64 exec, -1
    {Lw2}:
    """)
    Lp = a.label("a2_poll"); Lok = a.label("a2_ok")
    Lq = a.label("a2_pre")
    a(f"""
    s_mov_b32 s48, 0
    v_subrev_u32 {vr(tt[3])}, 4608, {vr(tt[2])}
    {Lq}:
    buffer_load_dword {vr(tt[4])}, {vr(tt[3])}, s[36:39], 0 offen sc1
    s_waitcnt vmcnt(0)
    v_cmp_eq_u32 vcc, -1, {vr(tt[4])}
    s_nop 1
    s_cbranch_vccz {Lp}
    s_sleep 8
    s_add_u32 s48, s48, 1
    s_cmp_lt_u32 s48, 100000
    s_cbranch_scc1 {Lq}
    {Lp}:
    v_subrev_u32 {vr(tt[3])}, {31*4608}, {vr(tt[2])}      ; index c-31  (k = 30)
    """)
    for k in range(31):
        a(f"buffer_load_dwordx2 {vr(EL+2*k,2)}, {vr(tt[3])}, s[36:39], 0 offen sc1\nv_add_u32 {vr(tt[3])}, 4608, {vr(tt[3])}")
    a(f"s_waitcnt vmcnt(0)\nv_mov_b32 {vr(tt[3])}, 0")
    a(f"v_add_u32 {vr(tt[4])}, 1, {vr(EL)}")
    for k in range(1, 31):
        a(f"v_add_u32 {vr(tt[5])}, 1, {vr(EL+2*k)}\nv_min_u32 {vr(tt[4])}, {vr(tt[4])}, {vr(tt[5])}")
    a(f"""
    v_cmp_eq_u32 vcc, 0, {vr(tt[4])}
    s_nop 1
    s_cbranch_vccz {Lok}
    s_sleep 16
    s_add_u32 s48, s48, 1
    s_cmp_lt_u32 s48, 100000
    s_cbranch_scc1 {Lp}
    {Lok}:
    """)
    if stamp: stamp_mark(a, 1)
    a(f"v_mov_b32 {vr(gr)}, {vr(EL)}\nv_mov_b32 {vr(gi)}, {vr(EL+1)}")
    cur = (gr, gi); oth = (tt[0], tt[1])
    for k in range(1, 31):
        cmad(a, oth[0], oth[1], l64r, l64i, cur[0], cur[1], EL+2*k, EL+2*k+1)
        cur, oth = oth, cur
    Gr, Gi = cur
    Ls = a.label("a2_s")
    a(f"s_cmp_eq_u32 s28, 0\ns_cbranch_scc1 {Ls}")
    cmad(a, oth[0], oth[1], l32r, l32i, Gr, Gi, W0, W0+1)
    a(f"v_mov_b32 {vr(Gr)}, {vr(oth[0])}\nv_mov_b32 {vr(Gi)}, {vr(oth[1])}\n{Ls}:")
    a(f"v_cmp_gt_u32 vcc, 32, {vr(vL)}")
    cmad(a, oth[0], oth[1], l16r, l16i, Gr, Gi, Er, Ei)
    a(f"""
    v_cndmask_b32 {vr(Gr)}, {vr(oth[0])}, {vr(Gr)}, vcc
    v_cndmask_b32 {vr(Gi)}, {vr(oth[1])}, {vr(Gi)}, vcc
    """)
    HA = [EL + g for g in range(4)]; PK = EL + 4
    a(f"""
    v_and_b32 {vr(tt[2])}, 31, {vr(vL)}                       ; p local
    v_lshrrev_b32 {vr(tt[3])}, 4, {vr(tt[2])}
    v_lshlrev_b32 {vr(tt[3])}, 11, {vr(tt[3])}                ; block*2048
    v_and_b32 {vr(tt[4])}, 3, {vr(tt[2])}
    v_lshlrev_b32 {vr(tt[4])}, 2, {vr(tt[4])}
    v_add_u32 {vr(tt[3])}, {vr(tt[3])}, {vr(tt[4])}
    v_lshrrev_b32 {vr(tt[4])}, 5, {vr(vL)}
    v_lshlrev_b32 {vr(tt[4])}, 10, {vr(tt[4])}                ; hh*16*64
    v_add_u32 {vr(tt[3])}, {vr(tt[3])}, {vr(tt[4])}
    s_lshl_b32 s46, s20, 12
    v_add_u32 {vr(tt[3])}, s46, {vr(tt[3])}
    v_lshrrev_b32 {vr(tt[2])}, 2, {vr(tt[2])}
    v_and_b32 {vr(tt[2])}, 3, {vr(tt[2])}                     ; c
    """)
    for g in range(4):
        a(f"v_xor_b32 {vr(tt[4])}, {g}, {vr(tt[2])}\nv_lshlrev_b32 {vr(tt[4])}, 4, {vr(tt[4])}\nv_add_u32 {vr(HA[g])}, {vr(tt[3])}, {vr(tt[4])}")
    pr, pi = Gr, Gi
    for i in range(16):
        cmad(a, RE+i, IM+i, lr, li, pr, pi, RE+i, IM+i)
        pr, pi = RE+i, IM+i
        d = PK + i
        a(f"""
        v_cvt_pk_bf16_f32 {vr(d)}, {vr(pr)}, {vr(pi)}
        ds_write_b32 {vr(HA[(i>>2)&3])}, {vr(d)} offset:{i*64}
        """)
    sc = " sc1" if signal_h else ""
    CPY = EL + 24
    a(f"""
    s_lshr_b32 s45, s26, 1
    s_mul_i32 s45, s45, 36
    s_lshr_b32 s47, s30, 4
    s_add_u32 s45, s45, s47
    s_lshl_b32 s45, s45, 13
    s_and_b32 s47, s26, 1
    s_lshl_b32 s47, s47, 12
    s_add_u32 s45, s45, s47
    s_lshl_b32 s47, s28, 11
    s_add_u32 s45, s45, s47
    s_add_u32 s45, s45, {WS_HP}
    s_add_u32 s47, s45, 8192
    v_lshlrev_b32 {vr(tt[2])}, 4, {vr(vL)}
    v_add_u32 {vr(tt[3])}, s46, {vr(tt[2])}
    s_waitcnt lgkmcnt(0)
    ds_read_b128 {vr(CPY,4)}, {vr(tt[3])}
    ds_read_b128 {vr(CPY+4,4)}, {vr(tt[3])} offset:1024
    ds_read_b128 {vr(CPY+8,4)}, {vr(tt[3])} offset:2048
    ds_read_b128 {vr(CPY+12,4)}, {vr(tt[3])} offset:3072
    s_waitcnt lgkmcnt(0)
    buffer_store_dwordx4 {vr(CPY,4)}, {vr(tt[2])}, s[32:35], s45 offen{sc}
    buffer_store_dwordx4 {vr(CPY+4,4)}, {vr(tt[2])}, s[32:35], s45 offen offset:1024{sc}
    buffer_store_dwordx4 {vr(CPY+8,4)}, {vr(tt[2])}, s[32:35], s47 offen{sc}
    buffer_store_dwordx4 {vr(CPY+12,4)}, {vr(tt[2])}, s[32:35], s47 offen offset:1024{sc}
    """)
    if signal_h:
        a(f"""
        s_lshr_b32 s46, s26, 1
        s_lshl_b32 s46, s46, 8
        s_add_u32 s46, s46, {WS_FLAG + 32*256}
        v_mov_b32 {vr(tt[3])}, s46
        v_mov_b32 {vr(tt[4])}, 1
        s_waitcnt vmcnt(0)
        s_mov_b64 exec, 1
        global_atomic_add {vr(tt[3])}, {vr(tt[4])}, s[62:63]
        s_mov_b64 exec, -1
        """)
    if stamp: stamp_mark(a, 2)
    a(f"s_branch {L_exit}")
    nv = R.next
    a(f"{L_ld}:")
    vL16 = 8
    srd(28, 62, WS_END)
    a(f"""
    s_sub_u32 s21, s20, 4              ; lw
    v_lshlrev_b32 {vr(vL16)}, 4, {vr(vL)}
    s_lshl_b32 s46, s21, 10
    s_mul_i32 s44, s26, {18*4096}
    s_add_u32 s44, s44, s46
    s_add_u32 s44, s44, {WS_XP}
    s_mul_i32 s45, s27, {18*8192}
    s_add_u32 s45, s45, s46
    s_add_u32 s45, s45, {WS_BP}
    """)
    loader(a, nt, vL16, 28, 44, 45, L_ldx, lag)
    a(f"{L_ldx}:\ns_barrier")
    a(f"{L_exit}:")
    Lx = a.label("a2_fin")
    a(f"""
    s_cmp_eq_u32 s18, 0
    s_cbranch_scc0 {Lx}
    s_cmp_lt_u32 s5, 4
    s_cbranch_scc0 {Lx}
    s_mov_b32 s18, 1
    s_setprio 3
    s_add_u32 s26, s4, 24
    s_add_u32 s27, s5, 5
    s_barrier
    s_branch {L_top}
    {Lx}:
    """)
    if cont is not None:
        a(f"s_branch {cont}")
    else:
        if stamp:
            a("s_waitcnt vmcnt(0)")
            stamp_end(a, 112)
        a("s_endpgm")
    return nv
```

```python
from asmlib import *
from layout import *

def gen_attn(a, stamp=False, exp=(), signal=False):
    R = Regs(start=1, limit=128)
    vL = R.alloc("lane"); vL16 = R.alloc("l16")
    vT = R.alloc("tmp0"); vT2 = R.alloc("tmp1"); vT3 = R.alloc("tmp2")
    aK1 = R.alloc("aK1"); aK2 = R.alloc("aK2"); aV = R.alloc("aV")
    lK1 = R.alloc("lK1"); lK2 = R.alloc("lK2"); lV = R.alloc("lV")
    Q1 = [R.alloc("Q1A", 4), R.alloc("Q1B", 4)]; Q2 = [R.alloc("Q2A", 4), R.alloc("Q2B", 4)]
    KA = R.alloc("KA", 4); KB = R.alloc("KB", 4)
    VA = [R.alloc("VA0", 4), R.alloc("VA1", 4)]
    VB = [R.alloc("VB0", 4), R.alloc("VB1", 4)]
    P = R.alloc("P", 8)
    vCA = R.alloc("cntaddr"); vOne = vT3; vPoll = vT2
    O = [R.alloc("OA", 16), R.alloc("OB", 16)]
    Sb = [R.alloc("SA", 16), R.alloc("SB", 16)]
    nv = R.next
    T = TILE_KV; SLOT = 8 * T
    NL3 = (T - 2048) // 16
    MF = "v_mfma_f32_32x32x16_bf16"
    L_stage = a.label("attn_stage"); L_nodma = a.label("attn_nodma"); L_bar = a.label("attn_bar")
    L_fall = a.label("attn_fallback"); L_store = a.label("attn_store")
    if stamp: stamp_begin(a)
    if 'prio' in exp: a("s_setprio 3")
    a(f"""
    s_load_dwordx2 s[4:5], s[0:1], 112
    v_and_b32 {vr(vL)}, 63, v0
    v_lshrrev_b32 {vr(vT)}, 6, v0
    v_lshlrev_b32 {vr(vL16)}, 4, {vr(vL)}
    v_readfirstlane_b32 s14, {vr(vT)}
    s_and_b32 s12, s2, 7
    s_lshr_b32 s13, s2, 3
    s_and_b32 s13, s13, 3
    s_lshl_b32 s13, s13, 3
    s_add_u32 s12, s12, s13          ; h
    s_lshr_b32 s13, s2, 5
    s_mul_i32 s15, s12, {64*T}
    s_add_u32 s15, s15, {WS_KV}
    s_and_b32 s19, s14, 3            ; q-group g
    s_lshr_b32 s23, s14, 2
    s_lshl_b32 s17, s23, 5
    s_add_u32 s17, s17, s19
    s_mul_i32 s17, s17, {T}
    s_add_u32 s17, s17, s15
    s_mul_i32 s18, s14, {T}
    s_lshl_b32 s21, s13, 3
    s_lshl_b32 s40, s19, 1
    s_add_u32 s21, s21, s40
    s_lshl_b32 s22, s12, 6
    s_add_u32 s22, s22, s21
    s_mul_i32 s22, s22, {TILE_Q}
    s_lshl_b32 s40, s12, 6
    v_and_b32 {vr(vT)}, 31, {vr(vL)}
    v_lshlrev_b32 {vr(lK2)}, 2, {vr(vT)}         ; (l&31)*4
    s_waitcnt lgkmcnt(0)
    s_mov_b32 s8, s4
    s_and_b32 s9, s5, 0xffff
    s_mov_b32 s10, {WS_END}
    s_mov_b32 s11, 0x20000
    """)
    def dma_stage():
        a(f"""
        s_mov_b32 m0, s18
        s_mov_b64 exec, {hex((1<<NL3)-1)}
        buffer_load_dwordx4 {vr(vL16)}, s[8:11], s17 offen offset:2048 lds
        s_mov_b64 exec, -1
        buffer_load_dwordx4 {vr(vL16)}, s[8:11], s17 offen lds
        buffer_load_dwordx4 {vr(vL16)}, s[8:11], s17 offen offset:1024 lds
        """)
    dma_stage()
    a(f"""
    s_add_u32 s17, s17, {4*T}
    s_add_u32 s18, s18, {SLOT}
    buffer_load_dwordx4 {vr(Q1[0],4)}, {vr(vL16)}, s[8:11], s22 offen
    buffer_load_dword {vr(Q2[0])}, {vr(lK2)}, s[8:11], s22 offen offset:1024
    buffer_load_dwordx4 {vr(Q1[1],4)}, {vr(vL16)}, s[8:11], s22 offen offset:{TILE_Q}
    buffer_load_dword {vr(Q2[1])}, {vr(lK2)}, s[8:11], s22 offen offset:{TILE_Q+1024}
    s_add_u32 s6, s4, s40
    s_addc_u32 s7, s5, 0
    s_add_u32 s6, s6, {WS_KMAX}
    s_addc_u32 s7, s7, 0
    s_load_dwordx16 s[24:39], s[6:7], 0
    """)
    for st in range(2):
        dma_stage()
        a(f"s_add_u32 s17, s17, {4*T}\ns_add_u32 s18, s18, {SLOT}")
    a(f"""
    s_mul_i32 s41, s23, {4*T}
    v_add_u32 {vr(lK1)}, s41, {vr(vL16)}
    v_add_u32 {vr(lK2)}, 1024, {vr(lK2)}
    v_add_u32 {vr(lK2)}, s41, {vr(lK2)}
    v_min_u32 {vr(vT3)}, 19, {vr(vT)}
    v_lshlrev_b32 {vr(vT3)}, 4, {vr(vT3)}
    v_lshrrev_b32 {vr(vT2)}, 5, {vr(vL)}          ; hh
    v_mul_u32_u24 {vr(vT2)}, {VHH}, {vr(vT2)}
    v_add_u32 {vr(lV)}, {vr(vT3)}, {vr(vT2)}
    v_add_u32 {vr(lV)}, 1152, {vr(lV)}
    v_add_u32 {vr(aV)}, s41, {vr(lV)}
    v_mov_b32 {vr(aK1)}, {vr(lK1)}
    v_mov_b32 {vr(aK2)}, {vr(lK2)}
    s_mov_b32 s20, 0
    s_lshl_b32 s41, s23, 2
    s_add_u32 s41, s41, {4*SLOT}
    v_mov_b32 {vr(vCA)}, s41
    s_mul_i32 s41, s23, {4*T}
    v_mov_b32 {vr(KB+1)}, 0x3f80
    v_mov_b32 {vr(KB+2)}, 0
    v_mov_b32 {vr(KB+3)}, 0
    """)
    for b in range(2):
        for i in range(16): a(f"v_mov_b32 {vr(O[b]+i)}, 0")
        a(f"v_mov_b32 {vr(Q2[b]+2)}, 0\nv_mov_b32 {vr(Q2[b]+3)}, 0")
    for i in range(4): a(f"v_mov_b32 {vr(VB[1]+i)}, 0\nv_mov_b32 {vr(P+4+i)}, 0")
    a("s_waitcnt lgkmcnt(0)")
    for i in range(1, 16): a(f"s_max_u32 s24, s24, s{24+i}")
    a(f"""
    s_waitcnt vmcnt(6)
    v_cmp_gt_u32 vcc, 32, {vr(vL)}              ; lanes < 32
    v_mov_b32 {vr(vT2)}, 0
    """)
    for b in range(2):
        a(f"""
        s_nop 0
        v_cndmask_b32 {vr(Q2[b])}, {vr(vT2)}, {vr(Q2[b])}, vcc
        v_mov_b32 {vr(vT)}, 0
        v_dot2_f32_bf16 {vr(vT)}, {vr(Q1[b])}, {vr(Q1[b])}, {vr(vT)}
        v_dot2_f32_bf16 {vr(vT)}, {vr(Q1[b]+1)}, {vr(Q1[b]+1)}, {vr(vT)}
        v_dot2_f32_bf16 {vr(vT)}, {vr(Q1[b]+2)}, {vr(Q1[b]+2)}, {vr(vT)}
        v_dot2_f32_bf16 {vr(vT)}, {vr(Q1[b]+3)}, {vr(Q1[b]+3)}, {vr(vT)}
        v_dot2_f32_bf16 {vr(vT)}, {vr(Q2[b])}, {vr(Q2[b])}, {vr(vT)}
        s_nop 2
        v_mov_b32 {vr(vT3)}, {vr(vT)}
        s_nop 1
        v_permlane32_swap_b32 {vr(vT)}, {vr(vT3)}
        s_nop 1
        v_add_f32 {vr(vT)}, {vr(vT)}, {vr(vT3)}      ; |q|^2
        v_mul_f32 {vr(vT)}, s24, {vr(vT)}
        v_sqrt_f32 {vr(vT)}, {vr(vT)}
        s_nop 0
        v_mul_f32 {vr(vT)}, 0x3f810000, {vr(vT)}     ; * (1+2^-7)
        v_add_u32 {vr(vT)}, 0xffff, {vr(vT)}
        v_lshrrev_b32 {vr(vT)}, 16, {vr(vT)}
        v_or_b32 {vr(vT)}, 0x8000, {vr(vT)}
        v_cndmask_b32 {vr(Q2[b]+1)}, {vr(vT2)}, {vr(vT)}, vcc
        """)
    if 'hb' in exp:
        a(f"v_mov_b32 {vr(vT)}, 0\nds_write_b32 {vr(vCA)}, {vr(vT)}\ns_waitcnt lgkmcnt(0)\ns_mov_b32 s55, 4\nv_mov_b32 {vr(vOne)}, 1")
    a(f"""
    s_barrier
    ds_read_b128 {vr(KA,4)}, {vr(aK1)}
    ds_read_b32 {vr(KB)}, {vr(aK2)}
    ds_read_b128 {vr(VA[0],4)}, {vr(aV)}
    ds_read_b128 {vr(VB[0],4)}, {vr(aV)} offset:{VJ}
    s_waitcnt lgkmcnt(0)
    {MF} {vr(Sb[0],16)}, {vr(KA,4)}, {vr(Q1[0],4)}, 0
    {MF} {vr(Sb[0],16)}, {vr(KB,4)}, {vr(Q2[0],4)}, {vr(Sb[0],16)}
    s_mov_b32 s16, 0
    s_nop 15
    """)
    a(f"v_add_u32 {vr(lV)}, s41, {vr(lV)}")
    if 'prio' in exp: a("s_setprio 3")
    if stamp: stamp_mark(a, 0)
    a(f"{L_stage}:")
    def E(S_, g):
        b = S_ + 4*g; p = P + 2*g
        a(f"""
        v_exp_f32 {vr(b)}, {vr(b)}
        v_exp_f32 {vr(b+1)}, {vr(b+1)}
        v_exp_f32 {vr(b+2)}, {vr(b+2)}
        v_exp_f32 {vr(b+3)}, {vr(b+3)}
        v_cvt_pk_bf16_f32 {vr(p)}, {vr(b)}, {vr(b+1)}
        v_cvt_pk_bf16_f32 {vr(p+1)}, {vr(b+2)}, {vr(b+3)}
        """)
    SA, SB = Sb; OA, OB = O
    spread = 'burst' not in exp
    if spread:
        a("s_cmp_lt_u32 s16, 5\ns_mov_b32 m0, s18")
    for tt in range(4):
        cur = tt & 1; nxt = cur ^ 1
        if 'prio' in exp and tt > 0: a(f"s_setprio {3-tt}")
        a(f"{MF} {vr(SB,16)}, {vr(KA,4)}, {vr(Q1[1],4)}, 0")
        if spread and tt < 3 and 'nobar' not in exp:
            Ls = a.label("skipdma")
            a(f"s_cbranch_scc0 {Ls}")
            if tt == 0:
                a(f"""
                s_mov_b64 exec, {hex((1<<NL3)-1)}
                buffer_load_dwordx4 {vr(vL16)}, s[8:11], s17 offen offset:2048 lds
                s_mov_b64 exec, -1
                """)
            else:
                a(f"buffer_load_dwordx4 {vr(vL16)}, s[8:11], s17 offen offset:{(tt-1)*1024} lds")
            a(f"{Ls}:")
        E(SA, 0)
        hb = 'hb' in exp
        a(f"{MF} {vr(SB,16)}, {vr(KB,4)}, {vr(Q2[1],4)}, {vr(SB,16)}")
        if hb and tt == 3: a(f"ds_read_b32 {vr(vPoll)}, {vr(vCA)}")
        E(SA, 1)
        a(f"{MF} {vr(OB,16)}, {vr(VB[nxt],4)}, {vr(P+4,4)}, {vr(OB,16)}")
        if tt == 3 and hb:
            Lok = a.label("hb_ok"); Lsp = a.label("hb_spin")
            a(f"""
            s_waitcnt lgkmcnt(0)
            v_readfirstlane_b32 s40, {vr(vPoll)}
            s_cmp_ge_u32 s40, s55
            s_cbranch_scc1 {Lok}
            {Lsp}:
            ds_read_b32 {vr(vPoll)}, {vr(vCA)}
            s_waitcnt lgkmcnt(0)
            v_readfirstlane_b32 s40, {vr(vPoll)}
            s_cmp_ge_u32 s40, s55
            s_cbranch_scc0 {Lsp}
            {Lok}:
            s_add_u32 s55, s55, 4
            s_add_u32 s17, s17, {4*T}
            s_add_u32 s18, s18, {SLOT}
            s_sub_u32 s40, s18, {4*SLOT}
            s_cmp_ge_u32 s18, {4*SLOT}
            s_cselect_b32 s18, s40, s18
            """)
        if tt == 3:
            if 'nobar' not in exp and not hb:
                if spread:
                    L6 = a.label("w6"); Lb = a.label("wb")
                    a(f"""
                    s_cmp_lt_u32 s16, 5
                    s_cbranch_scc1 {L6}
                    s_waitcnt vmcnt(0)
                    {L6}:
                    s_waitcnt vmcnt(6)
                    s_barrier
                    s_add_u32 s17, s17, {4*T}
                    s_add_u32 s18, s18, {SLOT}
                    s_sub_u32 s40, s18, {4*SLOT}
                    s_cmp_ge_u32 s18, {4*SLOT}
                    s_cselect_b32 s18, s40, s18
                    """)
                else:
                    a(f"""
                    s_cmp_ge_u32 s16, 6
                    s_cbranch_scc1 {L_nodma}
                    s_waitcnt vmcnt(3)
                    s_barrier
                    s_cmp_ge_u32 s16, 5
                    s_cbranch_scc1 {L_bar}
                    """)
                    dma_stage()
                    a(f"""
                    s_add_u32 s17, s17, {4*T}
                    s_add_u32 s18, s18, {SLOT}
                    s_sub_u32 s40, s18, {4*SLOT}
                    s_cmp_ge_u32 s18, {4*SLOT}
                    s_cselect_b32 s18, s40, s18
                    s_branch {L_bar}
                    {L_nodma}:
                    s_waitcnt vmcnt(0)
                    s_barrier
                    {L_bar}:
                    """)
            if 'prio' in exp: a("s_setprio 3")
            a(f"""
            s_add_u32 s20, s20, {SLOT}
            s_cmp_ge_u32 s20, {4*SLOT}
            s_cselect_b32 s20, 0, s20
            v_add_u32 {vr(aK1)}, s20, {vr(lK1)}
            v_add_u32 {vr(aK2)}, s20, {vr(lK2)}
            v_add_u32 {vr(aV)}, s20, {vr(lV)}
            """)
            off = 0
        else:
            off = (tt + 1) * T
        a(f"""
        ds_read_b128 {vr(KA,4)}, {vr(aK1)} offset:{off}
        ds_read_b32 {vr(KB)}, {vr(aK2)} offset:{off}
        ds_read_b128 {vr(VA[nxt],4)}, {vr(aV)} offset:{off}
        ds_read_b128 {vr(VB[nxt],4)}, {vr(aV)} offset:{off+VJ}
        """)
        E(SA, 2)
        a(f"{MF} {vr(OA,16)}, {vr(VA[cur],4)}, {vr(P,4)}, {vr(OA,16)}");            E(SA, 3)
        a("s_waitcnt lgkmcnt(0)")
        a(f"{MF} {vr(SA,16)}, {vr(KA,4)}, {vr(Q1[0],4)}, 0");                       E(SB, 0)
        a(f"{MF} {vr(SA,16)}, {vr(KB,4)}, {vr(Q2[0],4)}, {vr(SA,16)}")
        if hb and tt == 2:
            L6 = a.label("w6")
            a(f"""
            s_cmp_lt_u32 s16, 5
            s_cbranch_scc1 {L6}
            s_waitcnt vmcnt(0)
            {L6}:
            s_waitcnt vmcnt(6)
            s_mov_b64 exec, 1
            ds_add_u32 {vr(vCA)}, {vr(vOne)}
            s_mov_b64 exec, -1
            """)
        E(SB, 1)
        a(f"{MF} {vr(OA,16)}, {vr(VB[cur],4)}, {vr(P+4,4)}, {vr(OA,16)}");          E(SB, 2)
        a(f"{MF} {vr(OB,16)}, {vr(VA[cur],4)}, {vr(P,4)}, {vr(OB,16)}");            E(SB, 3)
    a(f"""
    s_add_u32 s16, s16, 1
    s_cmp_lt_u32 s16, 8
    s_cbranch_scc1 {L_stage}
    s_nop 1
    {MF} {vr(OB,16)}, {vr(VB[1],4)}, {vr(P+4,4)}, {vr(OB,16)}
    s_setprio 0
    s_nop 15
    s_nop 3
    """)
    if stamp: stamp_mark(a, 1)
    XB = 11 * 256
    L_hi = a.label("attn_hi"); L_x = a.label("attn_x")
    a(f"""
    s_barrier
    s_mul_i32 s40, s19, {2*XB}
    v_lshlrev_b32 {vr(vT)}, 2, {vr(vL)}
    v_add_u32 {vr(vT)}, s40, {vr(vT)}
    s_cmp_eq_u32 s23, 1
    s_cbranch_scc1 {L_hi}
    """)
    for i in range(11): a(f"ds_write_b32 {vr(vT)}, {vr(OB+i)} offset:{XB + i*256}")
    a(f"s_waitcnt lgkmcnt(0)\ns_barrier")
    for i in range(11): a(f"ds_read_b32 {vr(SA+i)}, {vr(vT)} offset:{i*256}")
    a("s_waitcnt lgkmcnt(0)")
    for i in range(11): a(f"v_add_f32 {vr(OA+i)}, {vr(OA+i)}, {vr(SA+i)}")
    a(f"s_branch {L_x}\n{L_hi}:")
    for i in range(11): a(f"ds_write_b32 {vr(vT)}, {vr(OA+i)} offset:{i*256}")
    a(f"s_waitcnt lgkmcnt(0)\ns_barrier")
    for i in range(11): a(f"ds_read_b32 {vr(SA+i)}, {vr(vT)} offset:{XB + i*256}")
    a("s_waitcnt lgkmcnt(0)")
    for i in range(11): a(f"v_add_f32 {vr(OA+i)}, {vr(OB+i)}, {vr(SA+i)}")
    for i in range(4): a(f"v_mov_b32 {vr(Q1[0]+i)}, {vr(Q1[1]+i)}")
    a(f"v_mov_b32 {vr(Q2[0])}, {vr(Q2[1])}")
    a(f"s_add_u32 s21, s21, 1\n{L_x}:")
    a(f"""
    v_mov_b32 {vr(vT)}, {vr(OA+10)}
    v_mov_b32 {vr(vT2)}, {vr(OA+10)}
    s_nop 1
    v_permlane32_swap_b32 {vr(vT)}, {vr(vT2)}
    s_nop 1
    v_mov_b32 {vr(vT2)}, 0x21800000              ; 2^-60
    v_cmp_nge_f32 vcc, {vr(vT)}, {vr(vT2)}
    s_nop 1
    s_cbranch_vccnz {L_fall}
    {L_store}:
    v_rcp_f32 {vr(vT)}, {vr(vT)}
    s_nop 0
    """)
    for i in range(10): a(f"v_mul_f32 {vr(OA+i)}, {vr(OA+i)}, {vr(vT)}")
    a(f"""
    v_cvt_pk_bf16_f32 {vr(P)}, {vr(OA)}, {vr(OA+1)}
    v_cvt_pk_bf16_f32 {vr(P+1)}, {vr(OA+2)}, {vr(OA+3)}
    v_cvt_pk_bf16_f32 {vr(P+2)}, {vr(OA+4)}, {vr(OA+5)}
    v_cvt_pk_bf16_f32 {vr(P+3)}, {vr(OA+6)}, {vr(OA+7)}
    v_cvt_pk_bf16_f32 {vr(P+4)}, {vr(OA+8)}, {vr(OA+9)}
    v_and_b32 {vr(vT)}, 31, {vr(vL)}
    v_lshrrev_b32 {vr(vT2)}, 3, {vr(vT)}
    v_and_b32 {vr(vT2)}, 1, {vr(vT2)}                 ; s(r)
    v_lshlrev_b32 {vr(vT)}, 5, {vr(vT)}               ; (l&31)*32
    s_lshr_b32 s40, s21, 2
    s_mul_i32 s40, s40, {36*4096}
    s_and_b32 s41, s21, 3
    s_lshl_b32 s41, s41, 10
    s_add_u32 s40, s40, s41
    s_add_u32 s40, s40, {WS_OP}
    v_lshrrev_b32 {vr(vT3)}, 5, {vr(vL)}
    v_xor_b32 {vr(vT3)}, {vr(vT3)}, {vr(vT2)}
    v_lshlrev_b32 {vr(vT3)}, 4, {vr(vT3)}
    v_add_u32 {vr(vT3)}, {vr(vT3)}, {vr(vT)}
    s_lshl_b32 s41, s12, 12
    s_add_u32 s41, s41, s40
    buffer_store_dwordx4 {vr(P,4)}, {vr(vT3)}, s[8:11], s41 offen{' sc1' if signal else ''}
    s_and_b32 s41, s12, 7
    s_lshr_b32 s41, s41, 2
    v_xor_b32 {vr(vT2)}, s41, {vr(vT2)}
    v_lshlrev_b32 {vr(vT2)}, 4, {vr(vT2)}
    v_add_u32 {vr(vT2)}, {vr(vT2)}, {vr(vT)}
    s_lshr_b32 s41, s12, 3
    s_add_u32 s41, s41, 32
    s_lshl_b32 s41, s41, 12
    s_add_u32 s41, s41, s40
    s_and_b32 s42, s12, 3
    s_lshl_b32 s42, s42, 2
    s_add_u32 s41, s41, s42
    s_mov_b32 exec_hi, 0
    buffer_store_dword {vr(P+4)}, {vr(vT2)}, s[8:11], s41 offen{' sc1' if signal else ''}
    s_mov_b64 exec, -1
    """)
    if signal:
        a(f"""
        s_lshr_b32 s40, s21, 2
        s_lshl_b32 s40, s40, 8
        s_add_u32 s40, s40, {WS_FLAG + 48*256}
        v_mov_b32 {vr(vT)}, s40
        v_mov_b32 {vr(vT2)}, 1
        s_waitcnt vmcnt(0)
        s_mov_b64 exec, 1
        global_atomic_add {vr(vT)}, {vr(vT2)}, s[4:5]
        s_mov_b64 exec, -1
        """)
    if stamp:
        a("s_waitcnt vmcnt(0)")
        stamp_end(a, 104)
    a("s_endpgm")
    L_p1 = a.label("fb_p1"); L_p2 = a.label("fb_p2")
    MX = aK1
    a(f"""
    {L_fall}:
    v_mov_b32 {vr(Q2[0]+1)}, 0
    v_mov_b32 {vr(MX)}, 0xff800000
    v_and_b32 {vr(vT)}, 31, {vr(vL)}
    v_lshlrev_b32 {vr(lK2)}, 2, {vr(vT)}
    s_mul_i32 s41, s23, {4*T}
    v_subrev_u32 {vr(lV)}, s41, {vr(lV)}
    s_mov_b32 s40, s15
    s_mov_b32 s16, 0
    {L_p1}:
    buffer_load_dwordx4 {vr(KA,4)}, {vr(vL16)}, s[8:11], s40 offen
    buffer_load_dword {vr(KB)}, {vr(lK2)}, s[8:11], s40 offen offset:1024
    s_waitcnt vmcnt(0)
    {MF} {vr(SA,16)}, {vr(KA,4)}, {vr(Q1[0],4)}, 0
    {MF} {vr(SA,16)}, {vr(KB,4)}, {vr(Q2[0],4)}, {vr(SA,16)}
    s_nop 15
    s_nop 3
    """)
    for i in range(0, 16, 2): a(f"v_max3_f32 {vr(MX)}, {vr(MX)}, {vr(SA+i)}, {vr(SA+i+1)}")
    a(f"""
    s_add_u32 s40, s40, {T}
    s_add_u32 s16, s16, 1
    s_cmp_lt_u32 s16, 64
    s_cbranch_scc1 {L_p1}
    v_mov_b32 {vr(vT)}, {vr(MX)}
    s_nop 1
    v_permlane32_swap_b32 {vr(MX)}, {vr(vT)}
    s_nop 1
    v_max_f32 {vr(MX)}, {vr(MX)}, {vr(vT)}
    """)
    for i in range(16): a(f"v_mov_b32 {vr(OA+i)}, 0")
    a(f"""
    s_mov_b32 s40, s15
    s_mov_b32 s16, 0
    {L_p2}:
    buffer_load_dwordx4 {vr(KA,4)}, {vr(vL16)}, s[8:11], s40 offen
    buffer_load_dword {vr(KB)}, {vr(lK2)}, s[8:11], s40 offen offset:1024
    buffer_load_dwordx4 {vr(VA[0],4)}, {vr(lV)}, s[8:11], s40 offen
    buffer_load_dwordx4 {vr(VB[0],4)}, {vr(lV)}, s[8:11], s40 offen offset:{VJ}
    s_waitcnt vmcnt(0)
    {MF} {vr(SA,16)}, {vr(KA,4)}, {vr(Q1[0],4)}, 0
    {MF} {vr(SA,16)}, {vr(KB,4)}, {vr(Q2[0],4)}, {vr(SA,16)}
    s_nop 15
    s_nop 3
    """)
    for i in range(16): a(f"v_sub_f32 {vr(SA+i)}, {vr(SA+i)}, {vr(MX)}")
    for i in range(16): a(f"v_exp_f32 {vr(SA+i)}, {vr(SA+i)}")
    a("s_nop 0")
    for i in range(8): a(f"v_cvt_pk_bf16_f32 {vr(P+i)}, {vr(SA+2*i)}, {vr(SA+2*i+1)}")
    a(f"""
    s_nop 1
    {MF} {vr(OA,16)}, {vr(VA[0],4)}, {vr(P,4)}, {vr(OA,16)}
    {MF} {vr(OA,16)}, {vr(VB[0],4)}, {vr(P+4,4)}, {vr(OA,16)}
    s_add_u32 s40, s40, {T}
    s_add_u32 s16, s16, 1
    s_cmp_lt_u32 s16, 64
    s_cbranch_scc1 {L_p2}
    s_nop 15
    s_nop 3
    v_mov_b32 {vr(vT)}, {vr(OA+10)}
    v_mov_b32 {vr(vT2)}, {vr(OA+10)}
    s_nop 1
    v_permlane32_swap_b32 {vr(vT)}, {vr(vT2)}
    s_nop 1
    s_branch {L_store}
    """)
    return nv
```

```python
from asmlib import *
from layout import *
import math, struct

XS = 16384
WSZ = 18432
STG = XS + WSZ
NS = 4; NSTG = 9
K1_LDS = NS * STG
QSCALE = (18 ** -0.5) * math.log2(math.e)
def f2u(x): return struct.unpack("<I", struct.pack("<f", x))[0]

def gen_qkv(a, stamp=False):
    R = Regs(start=1, limit=256)
    vL = R.alloc("lane"); vT = R.alloc("t0"); vT2 = R.alloc("t1"); vT3 = R.alloc("t2"); vT4 = R.alloc("t3")
    MF = "v_mfma_f32_16x16x32_bf16"
    L_ld = a.label("k1_loader"); L_epi = a.label("k1_epi")
    if stamp: stamp_begin(a)
    a(f"""
    s_load_dwordx2 s[4:5], s[0:1], 72
    s_load_dwordx2 s[6:7], s[0:1], 80
    s_load_dwordx2 s[34:35], s[0:1], 112
    v_and_b32 {vr(vL)}, 63, v0
    v_lshrrev_b32 {vr(vT)}, 6, v0
    s_and_b32 s36, s2, 7              ; xcd
    v_readfirstlane_b32 s20, {vr(vT)}
    s_lshr_b32 s37, s2, 3             ; li 0..23
    s_lshr_b32 s21, s36, 1
    s_lshl_b32 s21, s21, 2
    s_and_b32 s38, s37, 3
    s_add_u32 s21, s21, s38
    s_and_b32 s22, s36, 1
    s_mul_i32 s22, s22, 6
    s_lshr_b32 s38, s37, 2
    s_add_u32 s22, s22, s38
    s_lshr_b32 s23, s22, 2            ; type
    s_lshl_b32 s47, s37, 3
    s_add_u32 s47, s47, s20
    s_lshl_b32 s48, s47, 6
    v_add_u32 {vr(vT)}, s48, {vr(vL)}              ; idx 0..12287
    v_mul_u32_u24 {vr(vT2)}, 4682, {vr(vT)}
    v_lshrrev_b32 {vr(vT2)}, 16, {vr(vT2)}
    v_mul_u32_u24 {vr(vT3)}, 14, {vr(vT2)}
    v_sub_u32 {vr(vT3)}, {vr(vT)}, {vr(vT3)}
    v_mul_u32_u24 {vr(vT2)}, 3456, {vr(vT2)}
    v_lshlrev_b32 {vr(vT3)}, 7, {vr(vT3)}
    v_add_u32 {vr(vT4)}, {vr(vT2)}, {vr(vT3)}
    v_subrev_u32 {vr(vT)}, 7680, {vr(vT)}
    v_mul_u32_u24 {vr(vT2)}, 7282, {vr(vT)}
    v_lshrrev_b32 {vr(vT2)}, 16, {vr(vT2)}
    v_mul_u32_u24 {vr(vT3)}, 9, {vr(vT2)}
    v_sub_u32 {vr(vT3)}, {vr(vT)}, {vr(vT3)}
    v_mul_u32_u24 {vr(vT2)}, 1152, {vr(vT2)}
    v_lshlrev_b32 {vr(vT3)}, 7, {vr(vT3)}
    v_add_u32 {vr(vT3)}, {vr(vT2)}, {vr(vT3)}
    s_and_b32 s48, s36, 1
    s_mul_i32 s48, s48, 1728
    s_lshr_b32 s49, s36, 1
    s_mul_i32 s49, s49, {512*1152}
    s_waitcnt lgkmcnt(0)
    s_mov_b32 s8, s4
    s_and_b32 s9, s5, 0xffff
    s_mov_b32 s10, {2048*1152}
    s_mov_b32 s11, 0x20000
    s_mov_b32 s12, s6
    s_and_b32 s13, s7, 0xffff
    s_mov_b32 s14, {576*3456}
    s_mov_b32 s15, 0x20000
    s_cmp_lt_u32 s47, 126
    s_cbranch_scc0 {L_ld}_pw
    buffer_load_dword v230, {vr(vT4)}, s[12:15], s48 offen
    {L_ld}_pw:
    s_cmp_ge_u32 s47, 120
    s_cbranch_scc0 {L_ld}_px
    buffer_load_dword v231, {vr(vT3)}, s[8:11], s49 offen
    {L_ld}_px:
    s_cmp_ge_u32 s20, 4
    s_cbranch_scc1 {L_ld}
    """)
    def copy_offsets(CO):
        Lv2 = a.label("co_v"); Le2 = a.label("co_e")
        a(f"s_cmp_eq_u32 s23, 2\ns_cbranch_scc1 {Lv2}\ns_cmp_eq_u32 s23, 0\ns_mov_b32 s38, {TILE_KV}\ns_cselect_b32 s38, {TILE_Q}, s38")
        for u in range(5):
            a(f"""
            v_add_u32 {vr(vT)}, {64*u}, {vr(vL)}
            v_mul_u32_u24 {vr(vT2)}, 911, {vr(vT)}
            v_lshrrev_b32 {vr(vT2)}, 16, {vr(vT2)}        ; idx/72
            v_mul_u32_u24 {vr(vT3)}, 72, {vr(vT2)}
            v_sub_u32 {vr(vT3)}, {vr(vT)}, {vr(vT3)}
            v_lshlrev_b32 {vr(vT3)}, 4, {vr(vT3)}
            v_mul_lo_u32 {vr(vT2)}, {vr(vT2)}, s38
            v_add_u32 {vr(CO[u])}, {vr(vT2)}, {vr(vT3)}
            """)
        a(f"s_branch {Le2}\n{Lv2}:")
        for u in range(5):
            a(f"""
            v_add_u32 {vr(vT)}, {64*u}, {vr(vL)}
            v_mul_u32_u24 {vr(vT2)}, 820, {vr(vT)}
            v_lshrrev_b32 {vr(vT2)}, 16, {vr(vT2)}        ; idx/80
            v_mul_u32_u24 {vr(vT3)}, 80, {vr(vT2)}
            v_sub_u32 {vr(vT3)}, {vr(vT)}, {vr(vT3)}
            v_lshlrev_b32 {vr(vT3)}, 4, {vr(vT3)}
            v_mul_u32_u24 {vr(vT2)}, {TILE_KV}, {vr(vT2)}
            v_add_u32 {vr(CO[u])}, {vr(vT2)}, {vr(vT3)}
            v_add_u32 {vr(CO[u])}, 1152, {vr(CO[u])}
            """)
        a(f"{Le2}:")
    lX = [R.alloc("lX0"), R.alloc("lX1")]; aX = [R.alloc("aX0"), R.alloc("aX1")]
    lW = [R.alloc("lWa"), R.alloc("lWb")]; aW = [R.alloc("aWa"), R.alloc("aWb")]
    XF = [[R.alloc(f"XF{ks}{rt}", 4) for rt in range(2)] for ks in range(2)]
    WF = [[R.alloc(f"WF{ks}{ct}", 4) for ct in range(9)] for ks in range(2)]
    ACC = [[R.alloc(f"ACC{rt}{ct}", 4) for ct in range(9)] for rt in range(2)]
    EA = [[R.alloc(f"EA{ct}{u}") for u in range(2)] for ct in range(9)]
    ED = [[R.alloc(f"ED{ct}{u}") for u in range(2)] for ct in range(9)]
    A16 = R.alloc("A16"); A4 = R.alloc("A4"); SH = R.alloc("SH", 2); vG = R.alloc("vG")
    COc = [R.alloc(f"COc{u}") for u in range(5)]
    a(f"""
    v_and_b32 {vr(vT)}, 15, {vr(vL)}              ; r16
    v_lshrrev_b32 {vr(vG)}, 4, {vr(vL)}           ; g
    v_lshrrev_b32 {vr(vT3)}, 1, {vr(vT)}          ; f
    v_xor_b32 {vr(vT3)}, {vr(vT3)}, {vr(vG)}       ; phys(ks=0)
    s_lshl_b32 s38, s20, 5                        ; 32*w
    v_add_u32 {vr(vT4)}, s38, {vr(vT)}
    v_lshlrev_b32 {vr(vT4)}, 7, {vr(vT4)}
    v_lshlrev_b32 {vr(lX[0])}, 4, {vr(vT3)}
    v_add_u32 {vr(lX[0])}, {vr(lX[0])}, {vr(vT4)}
    v_xor_b32 {vr(lX[1])}, 64, {vr(lX[0])}
    v_lshrrev_b32 {vr(vT3)}, 2, {vr(vT)}          ; r
    v_lshlrev_b32 {vr(vT4)}, 3, {vr(vG)}
    v_add_u32 {vr(vT3)}, {vr(vT3)}, {vr(vT4)}
    v_mul_u32_u24 {vr(vT3)}, 288, {vr(vT3)}
    v_and_b32 {vr(vT4)}, 3, {vr(vL)}
    v_lshlrev_b32 {vr(vT4)}, 3, {vr(vT4)}
    v_add_u32 {vr(vT3)}, {vr(vT3)}, {vr(vT4)}
    v_add_u32 {vr(vT3)}, {XS}, {vr(vT3)}
    v_and_b32 {vr(vT4)}, 1, {vr(vG)}
    v_lshlrev_b32 {vr(vT2)}, 7, {vr(vT4)}
    v_add_u32 {vr(lW[0])}, {vr(vT3)}, {vr(vT2)}
    v_mul_u32_u24 {vr(vT2)}, 160, {vr(vT4)}
    v_sub_u32 {vr(lW[1])}, {vr(vT3)}, {vr(vT2)}
    v_mov_b32 {vr(aX[0])}, {vr(lX[0])}
    v_mov_b32 {vr(aX[1])}, {vr(lX[1])}
    v_mov_b32 {vr(aW[0])}, {vr(lW[0])}
    v_mov_b32 {vr(aW[1])}, {vr(lW[1])}
    """)
    for rt in range(2):
        for ct in range(9):
            for i in range(4): a(f"v_mov_b32 {vr(ACC[rt][ct]+i)}, 0")
    L_ev = a.label("k1_ev"); L_ed = a.label("k1_ed")
    a(f"""
    v_lshlrev_b32 {vr(A16)}, 4, {vr(vT)}
    v_lshlrev_b32 {vr(A4)}, 2, {vr(vT)}
    v_lshlrev_b32 {vr(vT2)}, 4, {vr(vG)}
    s_cmp_eq_u32 s23, 2
    s_cbranch_scc1 {L_ev}
    s_mul_i32 s39, s20, 1152
    v_add_u32 {vr(A16)}, s39, {vr(A16)}
    v_add_u32 {vr(A4)}, s39, {vr(A4)}
    """)
    for ct in range(9):
        for u in range(2):
            base = []; tail = []
            for g in range(4):
                col = 16*ct + 4*g + 2*u; sl = col // 18; d = col % 18
                base.append(sl*4608 + (1024 if d >= 16 else (d >> 3)*512 + (d & 7)*2)); tail.append(d >= 16)
            K = sum(b << (16*g) for g, b in enumerate(base))
            a(f"""
            s_mov_b32 s40, {hex(K & 0xffffffff)}
            s_mov_b32 s41, {hex(K >> 32)}
            v_lshrrev_b64 {vr(SH,2)}, {vr(vT2)}, s[40:41]
            v_and_b32 {vr(SH)}, 0xffff, {vr(SH)}
            """)
            if not any(tail):
                a(f"v_add_u32 {vr(EA[ct][u])}, {vr(SH)}, {vr(A16)}\nv_add_u32 {vr(ED[ct][u])}, 256, {vr(EA[ct][u])}")
            else:
                gt = tail.index(True); assert sum(tail) == 1
                a(f"""
                v_cmp_eq_u32 vcc, {gt}, {vr(vG)}
                v_add_u32 {vr(EA[ct][u])}, {vr(SH)}, {vr(A16)}
                v_add_u32 {vr(SH)}, {vr(SH)}, {vr(A4)}
                v_cndmask_b32 {vr(EA[ct][u])}, {vr(EA[ct][u])}, {vr(SH)}, vcc
                v_mov_b32 {vr(SH)}, 256
                v_mov_b32 {vr(SH+1)}, 64
                v_cndmask_b32 {vr(SH)}, {vr(SH)}, {vr(SH+1)}, vcc
                v_add_u32 {vr(ED[ct][u])}, {vr(EA[ct][u])}, {vr(SH)}
                """)
    a(f"s_branch {L_ed}\n{L_ev}:")
    a(f"""
    v_and_b32 {vr(vT3)}, 1, {vr(vG)}
    v_mul_u32_u24 {vr(vT3)}, {VHH}, {vr(vT3)}
    v_lshrrev_b32 {vr(vT2)}, 1, {vr(vG)}
    v_lshlrev_b32 {vr(vT2)}, 3, {vr(vT2)}
    v_add_u32 {vr(vT2)}, {vr(vT2)}, {vr(vT3)}
    s_mul_i32 s39, s20, {2*VJ}
    v_add_u32 {vr(vT2)}, s39, {vr(vT2)}
    """)
    for ct in range(9):
        a(f"""
        v_add_u32 {vr(vT3)}, {16*ct}, {vr(vT)}
        v_mul_u32_u24 {vr(vT4)}, 3641, {vr(vT3)}
        v_lshrrev_b32 {vr(vT4)}, 16, {vr(vT4)}           ; sl
        v_mul_u32_u24 {vr(SH)}, 18, {vr(vT4)}
        v_sub_u32 {vr(vT3)}, {vr(vT3)}, {vr(SH)}          ; d
        v_mul_u32_u24 {vr(vT4)}, {8*VJ}, {vr(vT4)}
        v_lshlrev_b32 {vr(vT3)}, 4, {vr(vT3)}
        v_add3_u32 {vr(EA[ct][0])}, {vr(vT4)}, {vr(vT3)}, {vr(vT2)}
        """)
    a(f"{L_ed}:")
    copy_offsets(COc)
    def reads(ks):
        s = []
        for rt in range(2): s.append(f"ds_read_b128 {vr(XF[ks][rt],4)}, {vr(aX[ks])} offset:{rt*2048}")
        for ct in range(9):
            for hf in range(2):
                s.append(f"ds_read_b64_tr_b16 {vr(WF[ks][ct]+2*hf,2)}, {vr(aW[0 if ct < 5 else 1])} offset:{ks*9216 + hf*1152 + ct*32}")
        return s
    def mfmas(ks, tv):
        s = []
        for ct in range(9):
            for rt in range(2):
                if tv: s.append(f"{MF} {vr(ACC[rt][ct],4)}, {vr(XF[ks][rt],4)}, {vr(WF[ks][ct],4)}, {vr(ACC[rt][ct],4)}")
                else:  s.append(f"{MF} {vr(ACC[rt][ct],4)}, {vr(WF[ks][ct],4)}, {vr(XF[ks][rt],4)}, {vr(ACC[rt][ct],4)}")
        return s
    def interleave(m, r, lead=0):
        out = []; r = list(r)
        for i, x in enumerate(m):
            out.append(x)
            if r: out.append(r.pop(0))
            if r and i < 2: out.append(r.pop(0))
        return out + r
    if stamp: stamp_mark(a, 0)
    Lv = a.label("k1_v")
    a(f"s_barrier")
    if stamp: stamp_mark(a, 1)
    a(f"s_mov_b32 s27, 0\ns_mov_b32 s29, 0\ns_cmp_eq_u32 s23, 2\ns_cbranch_scc1 {Lv}")
    for tv in range(2):
        if tv: a(f"{Lv}:")
        L = a.label("k1_loop"); Llast = a.label("k1_last")
        a("\n".join(reads(0)))
        a(f"{L}:")
        a("s_waitcnt lgkmcnt(0)")
        a("\n".join(interleave(mfmas(0, tv), reads(1))))
        a(f"""
        s_cmp_eq_u32 s27, {NSTG-1}
        s_cbranch_scc1 {Llast}
        s_add_u32 s29, s29, {STG}
        s_cmp_ge_u32 s29, {NS*STG}
        s_cselect_b32 s29, 0, s29
        v_add_u32 {vr(aX[0])}, s29, {vr(lX[0])}
        s_waitcnt lgkmcnt(0)
        v_add_u32 {vr(aW[0])}, s29, {vr(lW[0])}
        v_add_u32 {vr(aW[1])}, s29, {vr(lW[1])}
        s_barrier
        """)
        a("\n".join(interleave(mfmas(1, tv), reads(0))))
        a(f"""
        v_add_u32 {vr(aX[1])}, s29, {vr(lX[1])}
        s_add_u32 s27, s27, 1
        s_branch {L}
        {Llast}:
        s_waitcnt lgkmcnt(0)
        """)
        a("\n".join(mfmas(1, tv)))
        a(f"s_branch {L_epi}")
    a(f"{L_epi}:")
    if stamp: stamp_mark(a, 2)
    L_v = a.label("k1_epi_v"); L_co = a.label("k1_co"); L_co2 = a.label("k1_co2"); L_nk = a.label("k1_nok")
    a(f"""
    s_nop 7
    s_barrier
    s_cmp_eq_u32 s23, 2
    s_cbranch_scc1 {L_v}
    s_cmp_eq_u32 s23, 0
    s_cselect_b32 s38, {hex(f2u(QSCALE))}, 1.0
    """)
    for ct in range(9):
        for rt in range(2):
            b = ACC[rt][ct]
            a(f"""
            v_mul_f32 {vr(b)}, s38, {vr(b)}
            v_mul_f32 {vr(b+1)}, s38, {vr(b+1)}
            v_mul_f32 {vr(b+2)}, s38, {vr(b+2)}
            v_mul_f32 {vr(b+3)}, s38, {vr(b+3)}
            v_cvt_pk_bf16_f32 {vr(b)}, {vr(b)}, {vr(b+1)}
            v_cvt_pk_bf16_f32 {vr(b+2)}, {vr(b+2)}, {vr(b+3)}
            ds_write_b32 {vr((EA if rt == 0 else ED)[ct][0])}, {vr(b)}
            ds_write_b32 {vr((EA if rt == 0 else ED)[ct][1])}, {vr(b+2)}
            """)
    for u in range(5): a(f"v_mov_b32 v{12+u}, {vr(COc[u])}")
    a(f"s_branch {L_co}\n{L_v}:")
    for ct in range(9):
        for rt in range(2):
            b = ACC[rt][ct]
            a(f"""
            v_cvt_pk_bf16_f32 {vr(b)}, {vr(b)}, {vr(b+1)}
            v_cvt_pk_bf16_f32 {vr(b+1)}, {vr(b+2)}, {vr(b+3)}
            ds_write_b64 {vr(EA[ct][0])}, {vr(b,2)} offset:{rt*VJ}
            """)
    for u in range(5): a(f"v_mov_b32 v{12+u}, {vr(COc[u])}")
    a(f"s_branch {L_co}")
    a(f"{L_ld}:")
    R2 = Regs(start=R.names["t3"][0] + 1, limit=256)
    vXo = R2.alloc("xoff"); vWo = [R2.alloc(f"woff{u}") for u in range(5)]
    CO = [R2.alloc(f"CO{u}") for u in range(5)]
    assert CO == [12, 13, 14, 15, 16], CO
    CP = R2.alloc("CP", 20); KX = R2.alloc("KX", 12); PFD = R2.alloc("PFD", 4)
    a(f"""
    s_sub_u32 s24, s20, 4             ; lw
    v_lshrrev_b32 {vr(vT)}, 4, {vr(vL)}
    s_and_b32 s38, s24, 1
    s_lshl_b32 s38, s38, 2
    v_add_u32 {vr(vT)}, s38, {vr(vT)}
    v_and_b32 {vr(vT2)}, 7, {vr(vL)}
    v_xor_b32 {vr(vT)}, {vr(vT)}, {vr(vT2)}
    v_lshlrev_b32 {vr(vT)}, 4, {vr(vT)}
    v_lshrrev_b32 {vr(vT2)}, 3, {vr(vL)}
    v_mul_u32_u24 {vr(vT2)}, 1152, {vr(vT2)}
    v_add_u32 {vr(vXo)}, {vr(vT)}, {vr(vT2)}
    s_lshl_b32 s40, s21, 7
    s_lshl_b32 s38, s24, 3
    s_add_u32 s40, s40, s38
    s_mul_i32 s40, s40, 1152
    s_add_u32 s41, s40, {32*1152}
    s_add_u32 s42, s40, {64*1152}
    s_add_u32 s43, s40, {96*1152}
    s_lshl_b32 s38, s24, 4
    s_mul_i32 s44, s38, 3456
    s_mul_i32 s39, s22, 288
    s_add_u32 s44, s44, s39           ; W soffset
    """)
    for u in range(5):
        a(f"""
        v_add_u32 {vr(vT)}, {64*u}, {vr(vL)}
        v_mul_u32_u24 {vr(vT2)}, 3641, {vr(vT)}
        v_lshrrev_b32 {vr(vT2)}, 16, {vr(vT2)}
        v_mul_u32_u24 {vr(vT3)}, 18, {vr(vT2)}
        v_sub_u32 {vr(vT3)}, {vr(vT)}, {vr(vT3)}       ; pos
        v_and_b32 {vr(vT4)}, 8, {vr(vT2)}
        v_sub_u32 {vr(vT3)}, {vr(vT3)}, {vr(vT4)}
        v_add_u32 {vr(vT4)}, 18, {vr(vT3)}
        v_min_u32 {vr(vT3)}, {vr(vT3)}, {vr(vT4)}
        v_lshlrev_b32 {vr(vT3)}, 4, {vr(vT3)}
        v_mul_u32_u24 {vr(vT2)}, 3456, {vr(vT2)}
        v_add_u32 {vr(vWo[u])}, {vr(vT2)}, {vr(vT3)}
        """)
    a(f"""
    s_lshl_b32 s45, s24, 10
    s_mul_i32 s46, s24, 4608
    s_add_u32 s46, s46, {XS}
    s_mov_b32 s28, 0
    """)
    n = 9
    def dma():
        for u in range(4):
            a(f"""
            s_add_u32 m0, s28, s45
            s_add_u32 m0, m0, {u*4096}
            buffer_load_dwordx4 {vr(vXo)}, s[8:11], s{40+u} offen lds
            s_add_u32 s{40+u}, s{40+u}, 128
            """.replace("buffer_load", "s_nop 0\nbuffer_load"))
        a("s_add_u32 m0, s28, s46")
        for u in range(5):
            if u == 4: a("s_mov_b64 exec, 0xffffffff" .replace("s_mov_b64 exec, 0xffffffff", "s_mov_b32 exec_hi, 0"))
            else: a("s_nop 0")
            a(f"buffer_load_dwordx4 {vr(vWo[u])}, s[12:15], s44 offen lds")
            if u < 4: a("s_add_u32 m0, m0, 1024")
        a(f"""
        s_mov_b64 exec, -1
        s_add_u32 s44, s44, {64*3456}
        s_add_u32 s28, s28, {STG}
        s_cmp_ge_u32 s28, {NS*STG}
        s_cselect_b32 s28, 0, s28
        """)
    Lp = a.label("k1_pro"); Ll = a.label("k1_ll"); Lw = a.label("k1_lw"); Lt = a.label("k1_lt")
    dma(); dma()
    a(f"""
    s_waitcnt vmcnt({n})
    s_barrier
    """)
    dma()
    a(f"""
    s_mov_b32 s27, 0
    {Ll}:
    s_cmp_gt_u32 s27, {NSTG-3}
    s_cbranch_scc0 {Lw}
    s_waitcnt vmcnt(0)
    {Lw}:
    s_waitcnt vmcnt({n})
    s_barrier
    s_cmp_ge_u32 s27, {NSTG-3}        ; s+3 >= NSTG
    s_cbranch_scc1 {Lt}
    """)
    dma()
    a(f"""
    {Lt}:
    s_add_u32 s27, s27, 1
    s_cmp_lt_u32 s27, {NSTG-1}
    s_cbranch_scc1 {Ll}
    """)
    copy_offsets(CO)
    a(f"""
    s_barrier
    s_cmp_eq_u32 s23, 2
    s_cbranch_scc0 {L_co}
    v_lshlrev_b32 {vr(vT)}, 0, {vr(vL)}
    s_lshl_b32 s38, s24, 6
    v_add_u32 {vr(vT)}, s38, {vr(vT)}               ; 0..255
    v_lshrrev_b32 {vr(vT2)}, 1, {vr(vT)}
    v_mul_u32_u24 {vr(vT2)}, {VHH}, {vr(vT2)}
    v_and_b32 {vr(vT3)}, 1, {vr(vT)}
    v_lshlrev_b32 {vr(vT4)}, 4, {vr(vT3)}
    v_add_u32 {vr(vT2)}, {vr(vT2)}, {vr(vT4)}
    v_add_u32 {vr(vT2)}, {18*16}, {vr(vT2)}
    v_mov_b32 {vr(vT4)}, 0x3f803f80
    v_cmp_eq_u32 vcc, 0, {vr(vT3)}
    v_mov_b32 {vr(vT3)}, 0
    s_nop 0
    v_cndmask_b32 {vr(CP)}, {vr(vT3)}, {vr(vT4)}, vcc
    v_mov_b32 {vr(CP+1)}, {vr(CP)}
    v_mov_b32 {vr(CP+2)}, {vr(CP)}
    v_mov_b32 {vr(CP+3)}, {vr(CP)}
    ds_write_b128 {vr(vT2)}, {vr(CP,4)}
    {L_co}:
    """)
    a(f"""
    s_mov_b32 s16, s34
    s_and_b32 s17, s35, 0xffff
    s_mov_b32 s18, {WS_END}
    s_mov_b32 s19, 0x20000
    s_mov_b32 s50, s20                ; slice
    s_and_b32 s38, s22, 3
    s_lshl_b32 s38, s38, 3
    s_add_u32 s38, s38, s50           ; head
    s_lshl_b32 s39, s38, 6
    s_lshl_b32 s42, s21, 2
    s_add_u32 s39, s39, s42
    s_cmp_eq_u32 s23, 0
    s_mov_b32 s42, {TILE_KV}
    s_cselect_b32 s42, {TILE_Q}, s42
    s_mov_b32 s43, {WS_KV}
    s_cselect_b32 s43, {WS_Q}, s43
    s_mul_i32 s39, s39, s42
    s_add_u32 s39, s39, s43
    s_cmp_eq_u32 s23, 2
    s_mov_b32 s42, 4608
    s_cselect_b32 s42, {8*VJ}, s42
    s_mul_i32 s42, s42, s50
    v_lshlrev_b32 {vr(vT)}, 4, {vr(vL)}
    v_add_u32 {vr(vT)}, s42, {vr(vT)}
    s_waitcnt lgkmcnt(0)
    s_barrier
    """)
    for u in range(5): a(f"ds_read_b128 {vr(CP+4*u,4)}, {vr(vT)} offset:{u*1024}")
    for u in range(4):
        a(f"s_waitcnt lgkmcnt({4-u})\nbuffer_store_dwordx4 {vr(CP+4*u,4)}, {vr(CO[u])}, s[16:19], s39 offen")
    Lf = a.label("full5")
    a(f"""
    s_waitcnt lgkmcnt(0)
    s_cmp_eq_u32 s23, 2
    s_cbranch_scc1 {Lf}
    s_mov_b32 exec_hi, 0
    {Lf}:
    buffer_store_dwordx4 {vr(CP+16,4)}, {vr(CO[4])}, s[16:19], s39 offen
    s_mov_b64 exec, -1
    s_cmp_eq_u32 s23, 1
    s_cbranch_scc0 {L_nk}
    """)
    for rd in range(2):
        a(f"""
        v_lshrrev_b32 {vr(vT)}, 5, {vr(vL)}
        v_add_u32 {vr(vT)}, {2*rd}, {vr(vT)}
        v_mul_u32_u24 {vr(vT)}, 1152, {vr(vT)}
        v_add_u32 {vr(vT)}, s42, {vr(vT)}
        v_and_b32 {vr(vT2)}, 31, {vr(vL)}
        v_lshlrev_b32 {vr(vT3)}, 4, {vr(vT2)}
        v_add_u32 {vr(vT3)}, {vr(vT)}, {vr(vT3)}
        v_lshlrev_b32 {vr(vT2)}, 2, {vr(vT2)}
        v_add_u32 {vr(vT2)}, {vr(vT)}, {vr(vT2)}
        ds_read_b128 {vr(KX,4)}, {vr(vT3)}
        ds_read_b128 {vr(KX+4,4)}, {vr(vT3)} offset:512
        ds_read_b32 {vr(KX+8)}, {vr(vT2)} offset:1024
        s_waitcnt lgkmcnt(0)
        v_mov_b32 {vr(KX+10+rd)}, 0
        """)
        acc = KX+10+rd
        for r in range(9):
            a(f"v_dot2_f32_bf16 {vr(acc)}, {vr(KX+r)}, {vr(KX+r)}, {vr(acc)}")
        a("s_nop 2")
    m = KX+10
    a(f"v_max_f32 {vr(m)}, {vr(m)}, {vr(m+1)}")
    for ctrl in ("row_shr:1", "row_shr:2", "row_shr:4", "row_shr:8", "row_bcast:15 row_mask:0xa", "row_bcast:31 row_mask:0xc"):
        a(f"s_nop 1\nv_max_f32_dpp {vr(m)}, {vr(m)}, {vr(m)} {ctrl}")
    a(f"""
    s_nop 1
    v_readlane_b32 s43, {vr(m)}, 63
    s_lshl_b32 s38, s38, 6
    s_lshl_b32 s44, s21, 2
    s_add_u32 s38, s38, s44
    s_add_u32 s38, s38, {WS_KMAX}
    v_mov_b32 {vr(vT)}, s43
    v_mov_b32 {vr(vT2)}, 0
    s_mov_b64 exec, 1
    buffer_store_dword {vr(vT)}, {vr(vT2)}, s[16:19], s38 offen
    s_mov_b64 exec, -1
    {L_nk}:
    """)
    if stamp:
        a("s_waitcnt vmcnt(0)")
        stamp_end(a, 40)
    a("s_endpgm")
    return max(R.next, R2.next, 232)
```

```python
from asmlib import *
from layout import *
from nt2 import *

import os
YBUF = int(os.environ.get('YBUF', '1'))
G2_NS = 3
G2_STG = 2*(8192 + 64*64)
G2_LDS = G2_NS * G2_STG

def gen_g2(a, mode, wg="s2", stamp=False, wait_h=False, second=None, prio=None, ns=G2_NS, nobegin=False, direct=False, cont=None, marks=(0,1), nbuf=None):
    K = 1152 if mode == 'y' else 576
    NSTG = K // 64
    R = Regs(start=1, limit=128)
    nt = NT(64, ns, NSTG, SB=2)
    if stamp and not nobegin: stamp_begin(a)
    L_top = a.label("g2_top")
    if prio is not None: a(f"s_setprio {prio}")
    a(f"{L_top}:")
    a(f"""
    s_load_dwordx2 s[4:5], s[0:1], 0         ; A_x
    s_load_dwordx2 s[6:7], s[0:1], 64        ; Dskip
    s_load_dwordx2 s[8:9], s[0:1], 96        ; out
    s_load_dwordx4 s[60:63], s[0:1], 104
    """)
    if not direct:
        a(f"s_and_b32 s26, {wg}, 15\ns_lshr_b32 s27, {wg}, 4")
    vL, t = lane_consts(a, R)
    L_ld = a.label("g2_loader"); L_exit = a.label("g2_exit")
    def srd(d, lo, size):
        a(f"s_mov_b32 s{d}, s{lo}\ns_and_b32 s{d+1}, s{lo+1}, 0xffff\ns_mov_b32 s{d+2}, {size}\ns_mov_b32 s{d+3}, 0x20000")
    a("s_waitcnt lgkmcnt(0)")
    a(f"s_cmp_ge_u32 s20, 4\ns_cbranch_scc1 {L_ld}")
    ACC = [[R.alloc(f"ACC{j}", 16)] for j in range(2)]
    vO = R.alloc("vO"); vX = R.alloc("vX"); vD = R.alloc("vD")
    a(f"""
    s_lshr_b32 s28, s20, 1            ; th
    s_and_b32 s29, s20, 1             ; db
    """)
    srd(32, 8, OUT_BYTES)
    a(f"""
    s_lshl_b32 s30, s27, 6
    s_lshl_b32 s31, s29, 5
    s_add_u32 s30, s30, s31
    v_and_b32 {vr(t[0])}, 31, {vr(vL)}
    v_add_u32 {vr(t[0])}, s30, {vr(t[0])}          ; column
    v_lshrrev_b32 {vr(t[1])}, 5, {vr(vL)}
    v_lshlrev_b32 {vr(t[1])}, 2, {vr(t[1])}        ; 4hh
    s_lshl_b32 s31, s26, 7
    s_lshl_b32 s33, s28, 6
    """.replace("s_lshl_b32 s33, s28, 6", "s_lshl_b32 s44, s28, 6"))
    a(f"""
    s_add_u32 s31, s31, s44
    v_add_u32 {vr(t[1])}, s31, {vr(t[1])}          ; row (i=0,j=0)
    v_mul_u32_u24 {vr(vO)}, 4608, {vr(t[1])}
    v_lshlrev_b32 {vr(t[2])}, 2, {vr(t[0])}
    v_add_u32 {vr(vO)}, {vr(vO)}, {vr(t[2])}
    """)
    if mode == 'o':
        a(f"v_add_u32 {vr(vO)}, {576*4}, {vr(vO)}")
    XR = None
    if mode == 'y':
        srd(36, 4, 2048*1152); srd(40, 6, 1152)
        a(f"""
        v_mul_u32_u24 {vr(vX)}, 1152, {vr(t[1])}
        v_lshlrev_b32 {vr(t[2])}, 1, {vr(t[0])}
        v_add_u32 {vr(vX)}, {vr(vX)}, {vr(t[2])}
        buffer_load_ushort {vr(vD)}, {vr(t[2])}, s[40:43], 0 offen
        """)
    if mode == 'y':
        XR = R.alloc("XR", 32)
        for j in range(2):
            for i in range(16):
                row = 32*j + 8*(i//4) + i%4
                a(f"s_mov_b32 s45, {row*1152}\nbuffer_load_ushort {vr(XR+16*j+i)}, {vr(vX)}, s[36:39], s45 offen")
    for j in range(2):
        for i in range(16): a(f"v_mov_b32 {vr(ACC[j][0]+i)}, 0")
    a(f"s_lshl_b32 s28, s28, {11 if mode == 'o' else 12}\ns_lshl_b32 s29, s29, 11")
    lag = compute_loop(a, nt, R, vL, t, 28, 29, [0], [(0,0),(1,0)], ACC, (nbuf or (YBUF if mode == 'y' else 4)), a32=(mode == 'o'))
    if stamp: stamp_mark(a, marks[0])
    if mode == 'y':
        a(f"s_waitcnt vmcnt(0)\nv_lshlrev_b32 {vr(vD)}, 16, {vr(vD)}")
    for j in range(2):
        for i in range(16):
            row = 32*j + 8*(i//4) + i%4
            r = ACC[j][0]+i
            if mode == 'y':
                a(f"v_lshlrev_b32 {vr(XR+16*j+i)}, 16, {vr(XR+16*j+i)}\nv_fma_f32 {vr(r)}, {vr(XR+16*j+i)}, {vr(vD)}, {vr(r)}")
            a(f"s_mov_b32 s45, {row*4608}\nbuffer_store_dword {vr(r)}, {vr(vO)}, s[32:35], s45 offen")
    a(f"s_branch {L_exit}")
    nv = R.next
    a(f"{L_ld}:")
    vL16 = 8
    srd(28, 62, WS_END)
    baseA = WS_HP if mode == 'y' else WS_OP
    baseB = WS_CP if mode == 'y' else WS_WP
    if wait_h:
        Lp = a.label("g2_poll")
        a(f"""
        s_lshl_b32 s46, s26, 8
        s_add_u32 s46, s46, {WS_FLAG + (32 if mode == 'y' else 48)*256}
        v_mov_b32 {vr(t[3])}, s46
        s_mov_b32 s48, 0
        {Lp}:
        global_load_dword {vr(t[2])}, {vr(t[3])}, s[62:63] sc1
        s_waitcnt vmcnt(0)
        v_readfirstlane_b32 s47, {vr(t[2])}
        s_cmp_ge_u32 s47, {72 if mode == 'y' else 128}
        s_cbranch_scc1 {Lp}_ok
        s_sleep 8
        s_add_u32 s48, s48, 1
        s_cmp_lt_u32 s48, 400000
        s_cbranch_scc1 {Lp}
        {Lp}_ok:
        """)
        if stamp: stamp_mark(a, marks[1])
    a(f"""
    s_sub_u32 s21, s20, 4              ; lw
    v_lshlrev_b32 {vr(vL16)}, 4, {vr(vL)}
    s_lshl_b32 s46, s21, 10
    s_mul_i32 s44, s26, {2*NSTG*8192}
    s_add_u32 s44, s44, s46
    s_add_u32 s44, s44, {baseA}
    s_mul_i32 s45, s27, {2*NSTG*4096}
    s_add_u32 s45, s45, s46
    s_add_u32 s45, s45, {baseB}
    """)
    loader(a, nt, vL16, 28, 44, 45, L_exit, lag, prof=False)
    a(f"{L_exit}:")
    if second is not None:
        lim, add = second
        Lx = a.label("g2_fin")
        a(f"""
        s_cmp_lt_u32 {wg}, {lim}
        s_cbranch_scc0 {Lx}
        s_add_u32 {wg}, {wg}, {add}
        s_barrier
        s_branch {L_top}
        {Lx}:
        """)
    if cont is not None:
        a(f"s_branch {cont}")
    else:
        if stamp:
            a("s_waitcnt vmcnt(0)")
            stamp_end(a, 104)
        a("s_endpgm")
    return max(nv, R.next)
```

```python
from asmlib import *
from layout import *
import math, struct
def f2u(x): return struct.unpack("<I", struct.pack("<f", x))[0]
MF = "v_mfma_f32_32x32x16_bf16"

class NT:
    def __init__(self, NB, NS, NSTG, SB=1, NA=128):
        self.NB = NB; self.NS = NS; self.NSTG = NSTG; self.SB = SB
        self.BB = NB * 64
        self.AB = NA * 64
        self.AS = self.AB * SB
        self.STG = SB * (self.AB + self.BB)
        self.LDS = NS * self.STG

def lane_consts(a, R):
    vL = R.alloc("lane"); t = [R.alloc(f"t{i}") for i in range(4)]
    a(f"""
    v_and_b32 {vr(vL)}, 63, v0
    v_lshrrev_b32 {vr(t[0])}, 6, v0
    s_nop 0
    v_readfirstlane_b32 s20, {vr(t[0])}
    """)
    return vL, t

def loader(a, nt, vL16, srd, sA, sB, L_exit, lag, prof=False):
    NS, NSTG, STG, BB, SB, AS = nt.NS, nt.NSTG, nt.STG, nt.BB, nt.SB, nt.AS
    nA = AS // 4096; nB = SB * BB // 4096; n = nA + nB
    def dma():
        for u in range(nA):
            a(f"""
            s_add_u32 m0, s22, {u*4096}
            s_add_u32 s23, s{sA}, {u*4096}
            buffer_load_dwordx4 {vr(vL16)}, s[{srd}:{srd+3}], s23 offen lds
            """)
        for u in range(nB):
            a(f"""
            s_add_u32 m0, s22, {AS + u*4096}
            s_add_u32 s23, s{sB}, {u*4096}
            buffer_load_dwordx4 {vr(vL16)}, s[{srd}:{srd+3}], s23 offen lds
            """)
        a(f"""
        s_add_u32 s{sA}, s{sA}, {AS}
        s_add_u32 s{sB}, s{sB}, {SB*BB}
        s_add_u32 s22, s22, {STG}
        s_sub_u32 s23, s22, {NS*STG}
        s_cmp_ge_u32 s22, {NS*STG}
        s_cselect_b32 s22, s23, s22
        """)
    AH = NS - lag
    assert AH >= 1
    Ll = a.label("ld_loop"); Lt = a.label("ld_tail"); Lw = a.label("ld_w")
    a("s_lshl_b32 s22, s21, 10")
    dma()
    if AH >= 2 or NS >= 2: dma()
    a(f"s_waitcnt vmcnt({n})\ns_barrier")
    for x in range(2, AH + 1): dma()
    first_younger = max(AH, 1) - 1
    a(f"""
    s_mov_b32 s24, 1
    {Ll}:
    """)
    if prof: a("s_memtime s[70:71]\ns_waitcnt lgkmcnt(0)")
    a(f"""
    s_cmp_ge_u32 s24, {NSTG - AH + 1}
    s_cbranch_scc0 {Lw}
    s_waitcnt vmcnt(0)
    {Lw}:
    s_waitcnt vmcnt({(AH-1)*n})
    """)
    if prof: a("s_memtime s[72:73]\ns_waitcnt lgkmcnt(0)")
    a("s_barrier")
    if prof: a("s_memtime s[74:75]\ns_waitcnt lgkmcnt(0)")
    a(f"""
    s_cmp_ge_u32 s24, {NSTG - AH}
    s_cbranch_scc1 {Lt}
    """)
    dma()
    a(f"{Lt}:")
    if prof: a("""s_memtime s[76:77]
    s_waitcnt lgkmcnt(0)
    s_sub_u32 s78, s72, s70
    s_add_u32 s94, s94, s78
    s_sub_u32 s78, s74, s72
    s_add_u32 s96, s96, s78
    s_sub_u32 s78, s76, s74
    s_add_u32 s97, s97, s78""")
    a(f"""
    s_add_u32 s24, s24, 1
    s_cmp_lt_u32 s24, {NSTG}
    s_cbranch_scc1 {Ll}
    s_branch {L_exit}
    """)

def frag_base(a, R, vL, t, sA_off, sB_off, AS, a32=False):
    lA = R.alloc("lA"); lB = R.alloc("lB")
    a(f"""
    v_and_b32 {vr(t[0])}, 31, {vr(vL)}
    v_lshrrev_b32 {vr(t[1])}, 2, {vr(t[0])}
    v_and_b32 {vr(t[1])}, 3, {vr(t[1])}
    v_lshrrev_b32 {vr(t[2])}, 5, {vr(vL)}
    v_xor_b32 {vr(t[1])}, {vr(t[1])}, {vr(t[2])}
    v_lshlrev_b32 {vr(t[1])}, 4, {vr(t[1])}
    v_lshlrev_b32 {vr(t[0])}, 6, {vr(t[0])}
    v_add_u32 {vr(t[0])}, {vr(t[0])}, {vr(t[1])}
    v_add_u32 {vr(lA)}, s{sA_off}, {vr(t[0])}
    v_add_u32 {vr(lB)}, s{sB_off}, {vr(t[0])}
    v_add_u32 {vr(lB)}, {AS}, {vr(lB)}
    """)
    if a32:
        a(f"""
        v_and_b32 {vr(t[0])}, 31, {vr(vL)}
        v_lshrrev_b32 {vr(t[1])}, 3, {vr(t[0])}
        v_and_b32 {vr(t[1])}, 1, {vr(t[1])}
        v_lshrrev_b32 {vr(t[2])}, 5, {vr(vL)}
        v_xor_b32 {vr(t[1])}, {vr(t[1])}, {vr(t[2])}
        v_lshlrev_b32 {vr(t[1])}, 4, {vr(t[1])}
        v_lshlrev_b32 {vr(t[0])}, 5, {vr(t[0])}
        v_add_u32 {vr(t[0])}, {vr(t[0])}, {vr(t[1])}
        v_add_u32 {vr(lA)}, s{sA_off}, {vr(t[0])}
        """)
    return lA, lB

def compute_loop(a, nt, R, vL, t, sA_off, sB_off, b_imm, tiles, ACC, nbuf, a32=False):
    NS, NSTG, STG, SB, BB = nt.NS, nt.NSTG, nt.STG, nt.SB, nt.BB
    KS = 2 * SB
    nj = max(j for j, b in tiles) + 1; nb = len(b_imm); nr = nj + nb
    lA, lB = frag_base(a, R, vL, t, sA_off, sB_off, nt.AS, a32)
    aA = [R.alloc("aA0"), t[2]]; aB = [R.alloc("aB0"), t[3]]
    AF = [[R.alloc(f"AF{s}{j}", 4) for j in range(nj)] for s in range(nbuf)]
    BF = [[R.alloc(f"BF{s}{b}", 4) for b in range(nb)] for s in range(nbuf)]
    D = nbuf - 1
    G = KS * nbuf // math.gcd(KS, nbuf)
    NK = KS * NSTG
    assert NK % G == 0 and NK // G >= 2
    def set_addr():
        return f"""
        v_add_u32 {vr(aA[0])}, s25, {vr(lA)}
        v_add_u32 {vr(aB[0])}, s25, {vr(lB)}
        v_xor_b32 {vr(aA[1])}, 32, {vr(aA[0])}
        v_xor_b32 {vr(aB[1])}, 32, {vr(aB[0])}
        s_add_u32 s25, s25, {STG}
        s_cmp_ge_u32 s25, {NS*STG}
        s_cselect_b32 s25, 0, s25
        """
    def reads(k):
        bf = k % nbuf; ks = k & 1; blk = (k % KS) >> 1
        s = ""
        for j in range(nj):
            if a32: s += f"ds_read_b128 {vr(AF[bf][j],4)}, {vr(aA[0])} offset:{j*1024 + (k % KS)*(nt.AB//2)}\n"
            else:   s += f"ds_read_b128 {vr(AF[bf][j],4)}, {vr(aA[ks])} offset:{j*2048 + blk*nt.AB}\n"
        for b in range(nb): s += f"ds_read_b128 {vr(BF[bf][b],4)}, {vr(aB[ks])} offset:{b_imm[b] + blk*BB}\n"
        return s
    def mfmas(k):
        bf = k % nbuf
        return "".join(f"{MF} {vr(ACC[j][b],16)}, {vr(AF[bf][j],4)}, {vr(BF[bf][b],4)}, {vr(ACC[j][b],16)}\n" for j, b in tiles)
    Ll = a.label("c_loop")
    a("s_mov_b32 s25, 0")
    for k in range(D):
        if k % KS == 0: a(set_addr()); a("s_barrier")
        a(reads(k))
    a(f"s_mov_b32 s24, 0\n{Ll}:")
    def body(last):
        for kk in range(G):
            kn = kk + D
            if (not last) or (kn < G):
                if kn % KS == 0: a(set_addr()); a("s_waitcnt lgkmcnt(0)\ns_barrier")
                a(reads(kn))
                a(f"s_waitcnt lgkmcnt({min(D*nr, 15)})")
            else:
                a(f"s_waitcnt lgkmcnt({min((G - 1 - kk)*nr, 15)})")
            a(mfmas(kk))
    body(False)
    a(f"""
    s_add_u32 s24, s24, 1
    s_cmp_lt_u32 s24, {NK//G - 1}
    s_cbranch_scc1 {Ll}
    """)
    body(True)
    a("s_nop 15\ns_nop 3")
    lag = 1
    return lag
```

```python
from asmlib import *
from layout import *
from a1 import lam_from_regs
from nt2 import f2u

def gen_prep(a, wg="s2", stamp=False):
    R = Regs(start=1, limit=128)
    vT = R.alloc("tid")
    t0_ = R.alloc("t", 8, align=4); t = [t0_ + i for i in range(8)]
    def srd(d, lo, size):
        a(f"s_mov_b32 s{d}, s{lo}\ns_and_b32 s{d+1}, s{lo+1}, 0xffff\ns_mov_b32 s{d+2}, {size}\ns_mov_b32 s{d+3}, 0x20000")
    if stamp: stamp_begin(a)
    a(f"""
    s_load_dwordx4 s[4:7], s[0:1], 8
    s_load_dwordx4 s[8:11], s[0:1], 40
    s_load_dwordx2 s[12:13], s[0:1], 56       ; log_dt
    s_load_dwordx2 s[14:15], s[0:1], 88       ; wo
    s_load_dwordx2 s[16:17], s[0:1], 112      ; ws
    s_load_dwordx2 s[56:57], s[0:1], 0        ; A_x
    s_load_dwordx4 s[60:63], s[0:1], 24
    v_mov_b32 {vr(vT)}, v0
    s_waitcnt lgkmcnt(0)
    """)
    srd(20, 4, 1152); srd(24, 6, 1152); srd(28, 12, 1152); srd(32, 8, 576*1152); srd(36, 10, 576*1152); srd(40, 14, 576*1152); srd(44, 16, WS_END)
    Lz = a.label("prep_z")
    a(f"""
    s_cmp_eq_u32 {wg}, 0
    s_cbranch_scc0 {Lz}
    v_cmp_gt_u32 vcc, 64, {vr(vT)}
    s_and_saveexec_b64 s[52:53], vcc
    s_cbranch_execz {Lz}
    v_lshlrev_b32 {vr(t[0])}, 8, {vr(vT)}
    v_mov_b32 {vr(t[1])}, 0
    s_mov_b32 s54, {WS_FLAG}
    buffer_store_dword {vr(t[1])}, {vr(t[0])}, s[44:47], s54 offen
    {Lz}:
    s_mov_b64 exec, -1
    """)
    Le = a.label("prep_e")
    a(f"""
    v_cmp_gt_u32 vcc, 144, {vr(vT)}
    s_and_saveexec_b64 s[52:53], vcc
    s_cbranch_execz {Le}
    v_lshlrev_b32 {vr(t[0])}, 4, {vr(vT)}
    v_mov_b32 {vr(t[4])}, -1
    v_mov_b32 {vr(t[5])}, -1
    v_mov_b32 {vr(t[6])}, -1
    v_mov_b32 {vr(t[7])}, -1
    s_mul_i32 s54, {wg}, 2304
    s_add_u32 s54, s54, {WS_E}
    buffer_store_dwordx4 {vr(t[4],4)}, {vr(t[0])}, s[44:47], s54 offen
    {Le}:
    s_mov_b64 exec, -1
    """)
    XB_ = R.alloc("XB", 20); BB_ = R.alloc("BB", 12); vSX = R.alloc("vSX"); vSB = R.alloc("vSB"); vD16 = R.alloc("vD16"); vDX = R.alloc("vDX")
    a(f"""
    s_mov_b32 s64, s56
    s_and_b32 s65, s57, 0xffff
    s_mov_b32 s66, {2048*1152}
    s_mov_b32 s67, 0x20000
    v_readfirstlane_b32 s76, {vr(vT)}
    s_cmp_lt_u32 s76, 256
    s_cselect_b32 s68, s60, s62
    s_cselect_b32 s69, s61, s63
    s_and_b32 s69, s69, 0xffff
    s_mov_b32 s70, {576*1152}
    s_mov_b32 s71, 0x20000
    v_lshrrev_b32 {vr(t[0])}, 2, {vr(vT)}              ; r
    v_lshrrev_b32 {vr(t[1])}, 2, {vr(t[0])}
    v_xor_b32 {vr(t[1])}, {vr(t[1])}, {vr(vT)}
    v_and_b32 {vr(t[1])}, 3, {vr(t[1])}
    v_lshlrev_b32 {vr(t[1])}, 4, {vr(t[1])}            ; c*16
    v_and_b32 {vr(t[2])}, 63, {vr(t[0])}
    v_mul_u32_u24 {vr(t[2])}, 1152, {vr(t[2])}
    v_add_u32 {vr(vSB)}, {vr(t[2])}, {vr(t[1])}        ; B: (r&63)*1152 + c*16
    v_and_b32 {vr(t[2])}, 32, {vr(t[0])}
    v_lshrrev_b32 {vr(t[3])}, 2, {vr(t[0])}
    v_and_b32 {vr(t[3])}, 1, {vr(t[3])}
    v_lshlrev_b32 {vr(t[3])}, 4, {vr(t[3])}
    v_add_u32 {vr(t[2])}, {vr(t[2])}, {vr(t[3])}
    v_lshrrev_b32 {vr(t[3])}, 3, {vr(t[0])}
    v_and_b32 {vr(t[3])}, 3, {vr(t[3])}
    v_lshlrev_b32 {vr(t[3])}, 2, {vr(t[3])}
    v_add_u32 {vr(t[2])}, {vr(t[2])}, {vr(t[3])}
    v_and_b32 {vr(t[3])}, 3, {vr(t[0])}
    v_add_u32 {vr(t[2])}, {vr(t[2])}, {vr(t[3])}
    v_mul_u32_u24 {vr(t[2])}, 1152, {vr(t[2])}
    v_add_u32 {vr(vSX)}, {vr(t[2])}, {vr(t[1])}
    v_and_b32 {vr(vDX)}, 255, {vr(vT)}
    v_lshlrev_b32 {vr(vDX)}, 4, {vr(vDX)}
    s_lshr_b32 s82, s76, 8
    v_lshlrev_b32 {vr(vD16)}, 4, {vr(vT)}
    s_and_b32 s77, {wg}, 7             ; xcd
    s_lshr_b32 s78, {wg}, 3            ; j
    """)
    def xblk(u, store):
        a(f"""
        s_lshl_b32 s79, s78, 1
        s_add_u32 s79, s79, s82
        s_add_u32 s79, s79, {16*u}
        s_mul_i32 s80, s79, 3641
        s_lshr_b32 s80, s80, 16          ; lb/18
        s_mul_i32 s81, s80, 18
        s_sub_u32 s79, s79, s81          ; stage
        s_lshl_b32 s80, s80, 3
        s_add_u32 s80, s80, s77          ; chunk
        """)
        if not store:
            a(f"""
            s_mul_i32 s80, s80, {64*1152}
            s_lshl_b32 s79, s79, 6
            s_add_u32 s80, s80, s79
            buffer_load_dwordx4 {vr(XB_+4*u,4)}, {vr(vSX)}, s[64:67], s80 offen
            """)
        else:
            a(f"""
            s_mul_i32 s80, s80, 18
            s_add_u32 s80, s80, s79
            s_lshl_b32 s80, s80, 12
            s_add_u32 s80, s80, {WS_XP}
            buffer_store_dwordx4 {vr(XB_+4*u,4)}, {vr(vDX)}, s[44:47], s80 offen
            """)
    def bblk(u, store):
        a(f"""
        s_add_u32 s79, {wg}, {64*u}
        s_mul_i32 s80, s79, 3641
        s_lshr_b32 s80, s80, 16          ; pg
        s_mul_i32 s81, s80, 18
        s_sub_u32 s81, s79, s81          ; stage
        """)
        if not store:
            a(f"""
            s_mul_i32 s80, s80, {64*1152}
            s_lshl_b32 s81, s81, 6
            s_add_u32 s80, s80, s81
            buffer_load_dwordx4 {vr(BB_+4*u,4)}, {vr(vSB)}, s[68:71], s80 offen
            """)
        else:
            a(f"""
            s_lshl_b32 s79, s79, 13
            s_add_u32 s79, s79, {WS_BP}
            buffer_store_dwordx4 {vr(BB_+4*u,4)}, {vr(vD16)}, s[44:47], s79 offen
            """)
    def guarded(fn, u, store, cond):
        if cond is None: fn(u, store); return
        L = a.label("pk")
        a(f"{cond}\ns_cbranch_scc0 {L}")
        fn(u, store)
        a(f"{L}:")
    def pack(st):
        for u in range(5): guarded(xblk, u, st, "s_cmp_lt_u32 s78, 4" if u == 4 else None)
        for u in range(3): guarded(bblk, u, st, f"s_cmp_lt_u32 {wg}, {162-128}" if u == 2 else None)
    pack(False)
    if stamp: stamp_mark(a, 0)
    WB = R.alloc("WB", 8)
    a(f"""
    s_lshr_b32 s48, {wg}, 3            ; kb
    s_and_b32 s49, {wg}, 7             ; nb
    s_mul_i32 s50, s48, {72*1152}
    s_mul_i32 s51, s49, 144
    s_add_u32 s50, s50, s51
    """)
    LA = [R.alloc("LA0"), R.alloc("LA1")]
    for u in range(2):
        a(f"""
        v_add_u32 {vr(t[0])}, {512*u}, {vr(vT)}
        v_mul_u32_u24 {vr(t[1])}, 7282, {vr(t[0])}
        v_lshrrev_b32 {vr(t[1])}, 16, {vr(t[1])}
        v_mul_u32_u24 {vr(t[2])}, 9, {vr(t[1])}
        v_sub_u32 {vr(t[2])}, {vr(t[0])}, {vr(t[2])}      ; ch
        v_mul_u32_u24 {vr(t[3])}, 1152, {vr(t[1])}
        v_lshlrev_b32 {vr(t[4])}, 4, {vr(t[2])}
        v_add_u32 {vr(t[3])}, {vr(t[3])}, {vr(t[4])}
        v_mul_u32_u24 {vr(LA[u])}, 160, {vr(t[1])}
        v_add_u32 {vr(LA[u])}, {vr(LA[u])}, {vr(t[4])}
        buffer_load_dwordx4 {vr(WB+4*u,4)}, {vr(t[3])}, s[40:43], s50 offen
        """)
    Lskip = a.label("prep_skipc")
    LR = R.alloc("LR", 2); LI = R.alloc("LI", 2); LD = R.alloc("LD", 2)
    cr = R.alloc("cr", 2); ci = R.alloc("ci", 2); lb = R.alloc("lb", 2)
    CR = R.alloc("CR", 9); CI = R.alloc("CI", 9); OUT = R.alloc("OUT", 2)
    a(f"""
    v_lshlrev_b32 {vr(t[0])}, 2, {vr(vT)}
    buffer_load_dword {vr(t[1])}, {vr(t[0])}, s[20:23], 0 offen
    buffer_load_dword {vr(t[2])}, {vr(t[0])}, s[24:27], 0 offen
    buffer_load_dword {vr(t[3])}, {vr(t[0])}, s[28:31], 0 offen
    v_min_u32 {vr(t[7])}, 1148, {vr(t[0])}
    s_mul_i32 s54, {wg}, {9*1152}
    """)
    for r in range(9):
        a(f"""
        buffer_load_dword {vr(CR+r)}, {vr(t[7])}, s[32:35], s54 offen
        buffer_load_dword {vr(CI+r)}, {vr(t[7])}, s[36:39], s54 offen
        s_add_u32 s54, s54, 1152
        """)
    a("s_waitcnt vmcnt(21)")
    pack(True)
    a(f"""
    ds_write_b128 {vr(LA[0])}, {vr(WB,4)}
    v_cmp_gt_u32 vcc, {648-512}, {vr(vT)}
    s_and_saveexec_b64 s[52:53], vcc
    s_cbranch_execz {Lskip}_w
    ds_write_b128 {vr(LA[1])}, {vr(WB+4,4)}
    {Lskip}_w:
    s_mov_b64 exec, -1
    v_cmp_gt_u32 vcc, 288, {vr(vT)}
    s_and_saveexec_b64 s[52:53], vcc
    s_cbranch_execz {Lskip}
    """)
    a(f"""
    s_waitcnt vmcnt(6)
    v_lshlrev_b32 {vr(LR)}, 16, {vr(t[1])}
    v_and_b32 {vr(LR+1)}, 0xffff0000, {vr(t[1])}
    v_lshlrev_b32 {vr(LI)}, 16, {vr(t[2])}
    v_and_b32 {vr(LI+1)}, 0xffff0000, {vr(t[2])}
    v_lshlrev_b32 {vr(LD)}, 16, {vr(t[3])}
    v_and_b32 {vr(LD+1)}, 0xffff0000, {vr(t[3])}
    """)
    for e in range(2):
        lam_from_regs(a, LR+e, LI+e, LD+e, lb, lb+1, (t[4], t[5], t[6]), (cr+e, ci+e))
    CL = R.alloc("CL"); CC = R.alloc("CC")
    a(f"""
    v_lshrrev_b32 {vr(CL)}, 3, {vr(vT)}
    v_lshlrev_b32 {vr(CL)}, 12, {vr(CL)}            ; stage*4096
    v_and_b32 {vr(t[0])}, 1, {vr(vT)}
    v_lshlrev_b32 {vr(t[0])}, 3, {vr(t[0])}
    v_add_u32 {vr(CL)}, {vr(CL)}, {vr(t[0])}
    v_lshrrev_b32 {vr(CC)}, 1, {vr(vT)}
    v_and_b32 {vr(CC)}, 3, {vr(CC)}                 ; chunk
    s_mul_i32 s55, {wg}, 9                          ; d
    """)
    for r in range(9):
        for e in range(2):
            if e == 0: a(f"v_lshlrev_b32 {vr(t[1])}, 16, {vr(CR+r)}\nv_lshlrev_b32 {vr(t[2])}, 16, {vr(CI+r)}")
            else:      a(f"v_and_b32 {vr(t[1])}, 0xffff0000, {vr(CR+r)}\nv_and_b32 {vr(t[2])}, 0xffff0000, {vr(CI+r)}")
            a(f"""
            v_mul_f32 {vr(t[3])}, {vr(t[1])}, {vr(cr+e)}
            v_fma_f32 {vr(t[3])}, -{vr(t[2])}, {vr(ci+e)}, {vr(t[3])}
            v_mul_f32 {vr(t[4])}, {vr(t[1])}, {vr(ci+e)}
            v_fma_f32 {vr(t[4])}, {vr(t[2])}, {vr(cr+e)}, {vr(t[4])}
            v_mul_f32 {vr(t[3])}, 2.0, {vr(t[3])}
            v_mul_f32 {vr(t[4])}, -2.0, {vr(t[4])}
            v_cvt_pk_bf16_f32 {vr(OUT+e)}, {vr(t[3])}, {vr(t[4])}
            """)
        a(f"""
        s_lshr_b32 s54, s55, 6
        s_mul_i32 s54, s54, {36*4096}
        s_and_b32 s58, s55, 63
        s_lshl_b32 s59, s58, 6
        s_add_u32 s54, s54, s59
        s_add_u32 s54, s54, {WS_CP}
        s_lshr_b32 s58, s58, 2
        s_and_b32 s58, s58, 3
        v_xor_b32 {vr(t[0])}, s58, {vr(CC)}
        v_lshlrev_b32 {vr(t[0])}, 4, {vr(t[0])}
        v_add_u32 {vr(t[0])}, {vr(t[0])}, {vr(CL)}
        buffer_store_dwordx2 {vr(OUT,2)}, {vr(t[0])}, s[44:47], s54 offen
        s_add_u32 s55, s55, 1
        s_nop 0
        """)
    a(f"{Lskip}:\ns_mov_b64 exec, -1")
    if stamp: stamp_mark(a, 1)
    a(f"""
    s_waitcnt lgkmcnt(0)
    s_barrier
    """)
    G = R.alloc("G", 8); PK = R.alloc("PK", 4)
    for u in range(2):
        Ls = a.label("prep_o")
        a(f"""
        v_add_u32 {vr(t[0])}, {512*u}, {vr(vT)}
        v_cmp_gt_u32 vcc, 648, {vr(t[0])}
        s_and_saveexec_b64 s[52:53], vcc
        s_cbranch_execz {Ls}
        v_mul_u32_u24 {vr(t[1])}, 7282, {vr(t[0])}
        v_lshrrev_b32 {vr(t[1])}, 16, {vr(t[1])}          ; n
        v_mul_u32_u24 {vr(t[2])}, 9, {vr(t[1])}
        v_sub_u32 {vr(t[2])}, {vr(t[0])}, {vr(t[2])}      ; ch
        v_lshrrev_b32 {vr(t[3])}, 1, {vr(t[2])}
        v_mul_u32_u24 {vr(t[3])}, 18, {vr(t[3])}
        v_and_b32 {vr(t[4])}, 1, {vr(t[2])}
        v_lshlrev_b32 {vr(t[4])}, 2, {vr(t[4])}
        v_add_u32 {vr(t[3])}, {vr(t[3])}, {vr(t[4])}
        v_mul_u32_u24 {vr(t[3])}, 160, {vr(t[3])}
        v_lshlrev_b32 {vr(t[4])}, 1, {vr(t[1])}           ; n*2
        v_add_u32 {vr(t[3])}, {vr(t[3])}, {vr(t[4])}
        v_cmp_eq_u32 vcc, 8, {vr(t[2])}
        """)
        for e in range(8):
            main = (e if e < 4 else e + 4) * 160
            tail = (18*(e>>1) + 16 + (e&1)) * 160
            a(f"""
            v_add_u32 {vr(t[5])}, {main}, {vr(t[3])}
            v_add_u32 {vr(t[6])}, {tail}, {vr(t[4])}
            v_cndmask_b32 {vr(t[5])}, {vr(t[5])}, {vr(t[6])}, vcc
            ds_read_u16 {vr(G+e)}, {vr(t[5])}
            """)
        a("s_waitcnt lgkmcnt(0)")
        for e in range(4):
            a(f"v_lshlrev_b32 {vr(G+2*e+1)}, 16, {vr(G+2*e+1)}\nv_or_b32 {vr(PK+e)}, {vr(G+2*e)}, {vr(G+2*e+1)}")
        a(f"""
        s_mul_i32 s54, s49, 72
        v_add_u32 {vr(t[1])}, s54, {vr(t[1])}             ; n_g
        v_lshrrev_b32 {vr(t[5])}, 2, {vr(t[2])}
        s_lshl_b32 s54, s48, 1
        v_add_u32 {vr(t[5])}, s54, {vr(t[5])}
        s_lshr_b32 s54, s48, 2
        s_add_u32 s54, s54, 16
        v_mov_b32 {vr(t[6])}, s54
        v_cndmask_b32 {vr(t[5])}, {vr(t[5])}, {vr(t[6])}, vcc
        v_and_b32 {vr(t[3])}, 3, {vr(t[2])}
        s_and_b32 s54, s48, 3
        v_mov_b32 {vr(t[6])}, s54
        v_cndmask_b32 {vr(t[3])}, {vr(t[3])}, {vr(t[6])}, vcc      ; chunk
        v_lshrrev_b32 {vr(t[6])}, 6, {vr(t[1])}           ; cg
        v_mul_u32_u24 {vr(t[6])}, 18, {vr(t[6])}
        v_add_u32 {vr(t[5])}, {vr(t[5])}, {vr(t[6])}
        v_lshlrev_b32 {vr(t[5])}, 12, {vr(t[5])}
        v_and_b32 {vr(t[1])}, 63, {vr(t[1])}              ; r
        v_lshrrev_b32 {vr(t[6])}, 2, {vr(t[1])}
        v_and_b32 {vr(t[6])}, 3, {vr(t[6])}
        v_xor_b32 {vr(t[3])}, {vr(t[3])}, {vr(t[6])}
        v_lshlrev_b32 {vr(t[3])}, 4, {vr(t[3])}
        v_lshlrev_b32 {vr(t[1])}, 6, {vr(t[1])}
        v_add3_u32 {vr(t[1])}, {vr(t[1])}, {vr(t[3])}, {vr(t[5])}
        s_mov_b32 s54, {WS_WP}
        buffer_store_dwordx4 {vr(PK,4)}, {vr(t[1])}, s[44:47], s54 offen
        {Ls}:
        s_mov_b64 exec, -1
        """)
    if stamp:
        stamp_mark(a, 2)
        a("s_waitcnt vmcnt(0)")
        stamp_end(a, 104)
    a("s_endpgm")
    return max(R.next, 120)
```

```python
import sys
sys.path.insert(0, '../bench')
from asmlib import *
from layout import *
import k1, a1, a2, k3, attn2, prep
import os
APRIO = int(os.environ.get('APRIO', '3'))
YPRIO = int(os.environ.get('YPRIO', '3'))
NAME = "concat_heads__ssm_conv_s5__mha_block__prompt"
def build(stamp=False, exp=('prio','hb')):
    a = Asm()
    hdr = open('cdna_kernels/' + NAME + '.s.ref').read().split("; Override launch")[0]
    FUSE = int(os.environ.get('FUSE', '0'))
    launches = [("k1_kernel", 256, 512, k1.K1_LDS), ("k2_kernel", 512, 512, K2_LDS)]
    if not FUSE: launches.append(("k3_kernel", 288, 512, k3.G2_LDS))
    a.raw(hdr.rstrip())
    for n, g, b, l in launches: a.raw(f"; @launch kernel={n} grid=({g},1,1) block=({b},1,1) lds={l}")
    a.raw('.amdgcn_target "amdgcn-amd-amdhsa--gfx950"\n.text')
    descs = []
    def begin(n): a.raw(f'.globl {n}\n.p2align 8\n.type {n},@function\n{n}:')
    begin("k1_kernel")
    a("s_cmp_ge_u32 s2, 256\ns_cbranch_scc1 L_k1_exit\ns_cmp_ge_u32 s2, 192\ns_cbranch_scc1 L_k1_prep")
    nv = k1.gen_qkv(a, stamp=stamp)
    a.raw("L_k1_prep:")
    a("s_sub_u32 s3, s2, 192")
    nv2 = prep.gen_prep(a, wg="s3", stamp=stamp)
    a.raw("L_k1_exit:\n  s_endpgm")
    descs.append(kernel_desc("k1_kernel", (max(nv,nv2)+7)//8*8))
    begin("k2_kernel")
    a("s_cmp_ge_u32 s2, 512\ns_cbranch_scc1 L_k2_exit\ns_cmp_ge_u32 s2, 256\ns_cbranch_scc1 L_k2_a")
    nv = attn2.gen_attn(a, stamp=stamp, exp=exp, signal=bool(FUSE))
    a.raw("L_k2_a:")
    if stamp: stamp_begin(a)
    a("s_sub_u32 s3, s2, 256")
    if FUSE:
        nv = a2.gen_a2(a, wg="s3", stamp=stamp, prio=APRIO, signal_h=True, cont="L_k2_y")
        def tile_of(lo):
            a(f"""
            s_lshr_b32 s5, s3, 3
            s_sub_u32 s5, s5, {lo}
            s_cmp_ge_u32 s5, 9
            s_cselect_b32 s26, 8, 0
            s_cselect_b32 s27, 9, 0
            s_sub_u32 s27, s5, s27
            s_and_b32 s4, s3, 7
            s_add_u32 s26, s26, s4
            """)
        a.raw("L_k2_y:")
        a("s_lshr_b32 s5, s3, 3\ns_sub_u32 s5, s5, 4\ns_cmp_lt_u32 s5, 18\ns_cbranch_scc0 L_k2_o\ns_barrier")
        tile_of(4)
        nv = k3.gen_g2(a, 'y', stamp=stamp, wait_h=True, nobegin=True, direct=True, cont="L_k2_o", marks=(3,3), prio=YPRIO)
        a.raw("L_k2_o:")
        a("s_lshr_b32 s5, s3, 3\ns_cmp_ge_u32 s5, 14\ns_cbranch_scc0 L_k2_fin\ns_barrier")
        tile_of(14)
        nv = k3.gen_g2(a, 'o', stamp=stamp, wait_h=True, nobegin=True, direct=True, cont="L_k2_fin", marks=(2,1), prio=3)
        a.raw("L_k2_fin:")
        if stamp:
            a("s_waitcnt vmcnt(0)")
            stamp_end(a, 112)
        a("s_endpgm")
    else:
        nv = a2.gen_a2(a, wg="s3", stamp=stamp, prio=APRIO)
    a.raw("L_k2_exit:\n  s_endpgm")
    descs.append(kernel_desc("k2_kernel", 128))
    if not FUSE:
        begin("k3_kernel")
        a("""s_cmp_ge_u32 s2, 288
        s_cbranch_scc1 L_k3_exit
        s_cmp_lt_u32 s2, 112
        s_cbranch_scc1 L_k3_o1
        s_cmp_ge_u32 s2, 256
        s_cbranch_scc1 L_k3_o2
        s_sub_u32 s3, s2, 112""")
        nv = k3.gen_g2(a, 'y', wg="s3", stamp=stamp, nbuf=4)
        a.raw("L_k3_o2:")
        a("s_sub_u32 s2, s2, 144")
        a.raw("L_k3_o1:")
        if stamp: a("s_mov_b32 s3, s2\ns_cmp_ge_u32 s3, 112\ns_cselect_b32 s2, 144, 0\ns_add_u32 s2, s2, s3")
        else: a("s_mov_b32 s3, s2")
        nv = k3.gen_g2(a, 'o', wg="s3", stamp=stamp, nbuf=4)
        a.raw("L_k3_exit:\n  s_endpgm")
        descs.append(kernel_desc("k3_kernel", 128))
    a.raw('.section .rodata,"a"')
    for d in descs: a.raw(d)
    return a.text(), launches
if __name__ == "__main__":
    stamp = 'stamp' in sys.argv
    txt, launches = build(stamp)
    if stamp:
        import mkco, json
        mkco.build(txt, os.environ.get("OUT", "full_stamp.co"), 15)
        json.dump(launches, open("launches.json","w"))
    else:
        open('cdna_kernels/' + NAME + '.s', 'w').write(txt)
        import mkco, json
        mkco.build(txt, "full.co", 15)
        json.dump(launches, open("launches.json","w"))
    print("bytes", len(txt))
```
